```python
import torch

def _softmax(x, axis=-1):
    return torch.softmax(x, dim=axis)
def _gelu(x):
    return torch.nn.functional.gelu(x, approximate="tanh")
def _silu(x):
    return torch.nn.functional.silu(x)
def _sigmoid(x):
    return torch.sigmoid(x)
def _layernorm(x, axis=-1, eps=1e-5):
    m = x.mean(dim=axis, keepdim=True)
    v = x.var(dim=axis, keepdim=True, unbiased=False)
    return (x - m) / torch.sqrt(v + eps)
def _scatter_add(tgt, idx, src, axis=0):
    return tgt.clone().index_add_(axis, idx, src)
def _segment_sum(src, seg, n):
    out = torch.zeros((n,) + src.shape[1:], dtype=src.dtype)
    return out.index_add_(0, seg, src)
def _pad(x, pw):
    flat = tuple(v for pair in reversed(pw) for v in pair)
    return torch.nn.functional.pad(x, flat)

kernel_name = 'standalone__gqa_softmax__sampling'

def setup_inputs():

    _w = (lambda a: (lambda t: t.to(torch.bfloat16) if t.is_floating_point() else t)(torch.as_tensor(a)))
    B, Hq, Hkv, Sq, Sk, D = 8, 32, 8, 32, 2048, 128
    return {
        "q": _w((lambda *s: torch.randn(*s, dtype=torch.bfloat16) * 0.8)(B, Hq, Sq, D)),
        "k": _w((lambda *s: torch.randn(*s, dtype=torch.bfloat16) * 0.8)(B, Hkv, Sk, D)),
        "v": _w((lambda *s: torch.randn(*s, dtype=torch.bfloat16) * 0.05)(B, Hkv, Sk, D)),
    }

def reference(q, k, v):
    B, Hq, Sq, D = q.shape
    Hkv = k.shape[1]
    rep = Hq // Hkv
    k = (lambda x, n, axis: torch.repeat_interleave(x, n, dim=axis))(k, rep, axis=1)
    v = (lambda x, n, axis: torch.repeat_interleave(x, n, dim=axis))(v, rep, axis=1)
    scale = D ** -0.5
    scores = torch.einsum("bhqd,bhkd->bhqk", q, k) * scale
    p = _softmax(scores, axis=-1)
    return torch.einsum("bhqk,bhkd->bhqd", p, v)
```

```python
import sys
L = []
def e(s): L.append("    " + s)
def lab(s): L.append(s + ":")
def c(s): L.append("    ; " + s)

NT = 8
NSLOT = 5
SLOT = 32768
NTFLAG = " nt" if (len(sys.argv) > 1 and 'nt' in sys.argv[1:]) else ""

Q=16; S=48; P=80; O=96; KF=160; KA=224; KC=232; VA=240; VC=244
vM=1; vL=2; vAl=3; vT=4; vT2=5; vMC=6; vKoff=7; vVoff=8; vLane=9; vX=10; vY=11; vZ=12; vW=13

hdr = """; Kernarg layout for this problem (48 bytes, ptrs only, base s[0:1]):
;   offset   0: d_in[0] q  shape=(8, 32, 32, 128) dtype=bfloat16 strides=(262144, 8192, 256, 2) contiguous=True
;   offset   8: d_in[1] k  shape=(8, 8, 2048, 128) dtype=bfloat16 strides=(4194304, 524288, 256, 2) contiguous=True
;   offset  16: d_in[2] v  shape=(8, 8, 2048, 128) dtype=bfloat16 strides=(4194304, 524288, 256, 2) contiguous=True
; @launch grid=(256,1,1) block=(256,1,1) lds=163840
.amdgcn_target "amdgcn-amd-amdhsa--gfx950"
.text
.globl standalone__gqa_softmax__sampling_kernel
.p2align 8
.type standalone__gqa_softmax__sampling_kernel,@function
standalone__gqa_softmax__sampling_kernel:
"""

e("s_cmp_ge_u32 s2, 256")
e("s_cbranch_scc1 L_end")
e("s_load_dwordx4 s[4:7], s[0:1], 0")
e("s_load_dwordx4 s[8:11], s[0:1], 16")
e("s_load_dwordx4 s[12:15], s[0:1], 32")
e("v_and_b32 v%d, 63, v0" % vLane)
e("v_lshrrev_b32 v%d, 6, v0" % vX)
e("s_nop 0")
e("v_readfirstlane_b32 s36, v%d" % vX)
e("s_lshr_b32 s37, s2, 2")
e("s_and_b32 s38, s2, 3")
e("s_lshl_b32 s39, s37, 19")
e("s_lshl_b32 s41, s38, 17")
e("s_add_u32 s39, s39, s41")
e("s_mov_b32 s40, 0x3e0293ee")
e("s_waitcnt lgkmcnt(0)")
for (base, p, n) in ((16,6,33554432),(20,8,33554432),(24,4,2097152),(28,10,2097152),(32,14,268435456)):
    e("s_mov_b32 s%d, s%d" % (base, p))
    e("s_and_b32 s%d, s%d, 0xffff" % (base+1, p+1))
    e("s_mov_b32 s%d, %d" % (base+2, n))
    e("s_mov_b32 s%d, 0x00020000" % (base+3))

e("s_lshl_b32 s42, s37, 2")
e("s_add_u32 s42, s42, s36")
e("s_lshl_b32 s43, s42, 13")
e("v_and_b32 v%d, 31, v%d" % (vX, vLane))
e("v_lshlrev_b32 v%d, 8, v%d" % (vX, vX))
e("v_lshrrev_b32 v%d, 5, v%d" % (vY, vLane))
e("v_lshlrev_b32 v%d, 4, v%d" % (vZ, vY))
e("v_add_u32 v%d, v%d, v%d" % (vX, vX, vZ))
for t in range(8):
    e("buffer_load_dwordx4 v[%d:%d], v%d, s[24:27], s43 offen offset:%d" % (Q+4*t, Q+4*t+3, vX, 32*t))

e("v_lshrrev_b32 v%d, 4, v%d" % (vX, vLane))
e("v_and_b32 v%d, 15, v%d" % (vY, vLane))
e("s_lshl_b32 s44, s36, 2")
e("v_add_u32 v%d, s44, v%d" % (vZ, vX))
e("v_xor_b32 v%d, v%d, v%d" % (vW, vY, vZ))
e("v_lshlrev_b32 v%d, 4, v%d" % (vW, vW))
e("v_lshl_add_u32 v%d, v%d, 8, v%d" % (vKoff, vZ, vW))
e("v_lshlrev_b32 v%d, 2, v%d" % (vW, vX))
e("v_xor_b32 v%d, v%d, v%d" % (vW, vY, vW))
e("v_lshlrev_b32 v%d, 4, v%d" % (vW, vW))
e("v_lshl_add_u32 v%d, v%d, 8, v%d" % (vVoff, vZ, vW))

def issue_tile(t):
    slot = t % NSLOT
    for n in range(4):
        e("s_lshl_b32 s45, s36, 10")
        e("s_add_u32 m0, s45, %d" % (slot*SLOT + n*4096))
        e("s_add_u32 s46, s39, %d" % (t*16384 + n*4096))
        e("buffer_load_dwordx4 v%d, s[16:19], s46 offen%s lds" % (vKoff, NTFLAG))
    for n in range(4):
        e("s_lshl_b32 s45, s36, 10")
        e("s_add_u32 m0, s45, %d" % (slot*SLOT + 16384 + n*4096))
        e("s_add_u32 s46, s39, %d" % (t*16384 + n*4096))
        e("buffer_load_dwordx4 v%d, s[20:23], s46 offen%s lds" % (vVoff, NTFLAG))

for t in range(NSLOT):
    issue_tile(t)

e("v_and_b32 v%d, 31, v%d" % (vX, vLane))
e("v_lshrrev_b32 v%d, 5, v%d" % (vY, vLane))
e("v_and_b32 v%d, 15, v%d" % (vZ, vLane))
for t in range(8):
    e("v_or_b32 v%d, %d, v%d" % (vW, 2*t, vY))
    e("v_xor_b32 v%d, v%d, v%d" % (vW, vW, vZ))
    e("v_lshlrev_b32 v%d, 4, v%d" % (vW, vW))
    e("v_lshl_add_u32 v%d, v%d, 8, v%d" % (KA+t, vX, vW))
e("v_lshrrev_b32 v%d, 5, v%d" % (vX, vLane))
e("v_bfe_u32 v%d, v%d, 2, 2" % (vY, vLane))
e("v_lshl_add_u32 v%d, v%d, 2, v%d" % (vZ, vX, vY))
e("v_lshlrev_b32 v%d, 8, v%d" % (vZ, vZ))
e("v_bfe_u32 v%d, v%d, 4, 1" % (vX, vLane))
e("v_lshl_add_u32 v%d, v%d, 5, v%d" % (vZ, vX, vZ))
e("v_and_b32 v%d, 3, v%d" % (vX, vLane))
e("v_lshl_add_u32 v%d, v%d, 3, v%d" % (vZ, vX, vZ))
e("v_add_u32 v%d, 16384, v%d" % (vZ, vZ))
for db in range(4):
    e("v_xor_b32 v%d, %d, v%d" % (vW, db, vY))
    e("v_lshl_add_u32 v%d, v%d, 6, v%d" % (VA+db, vW, vZ))

issued = NSLOT
for t in range(NT):
    slot = t % NSLOT
    c("===== tile %d" % t)
    e("s_waitcnt vmcnt(%d)" % ((issued - 1 - t)*8))
    e("s_barrier")
    if t >= 1 and issued < NT:
        issue_tile(issued); issued += 1
    for k in range(8):
        e("v_add_u32 v%d, %d, v%d" % (KC+k, slot*SLOT, KA+k))
    for k in range(4):
        e("v_add_u32 v%d, %d, v%d" % (VC+k, slot*SLOT, VA+k))
    for kb in range(2):
        for k in range(8):
            f = KF + (kb*8+k)*4
            e("ds_read_b128 v[%d:%d], v%d offset:%d" % (f, f+3, KC+k, kb*8192))
    for kb in range(2):
        for k in range(8):
            f = KF + (kb*8+k)*4
            e("s_waitcnt lgkmcnt(%d)" % (15 - (kb*8+k)))
            s = S+16*kb
            if k == 0:
                e("v_mfma_f32_32x32x16_bf16 v[%d:%d], v[%d:%d], v[%d:%d], 0" % (s, s+15, f, f+3, Q, Q+3))
            else:
                e("v_mfma_f32_32x32x16_bf16 v[%d:%d], v[%d:%d], v[%d:%d], v[%d:%d]" % (s, s+15, f, f+3, Q+4*k, Q+4*k+3, s, s+15))
    for db in range(4):
        for ks in range(4):
            for u in range(2):
                a = (db*4+ks)*4 + 2*u
                e("ds_read_b64_tr_b16 a[%d:%d], v%d offset:%d" % (a, a+1, VC+db, (ks*16+u*8)*256))
    e("s_nop 7")
    e("v_max3_f32 v%d, v%d, v%d, v%d" % (vT, S, S+1, S+2))
    for i in range(3, 31, 2):
        e("v_max3_f32 v%d, v%d, v%d, v%d" % (vT, vT, S+i, S+i+1))
    e("v_max_f32 v%d, v%d, v%d" % (vT, vT, S+31))
    e("v_mov_b32 v%d, v%d" % (vT2, vT))
    e("s_nop 1")
    e("v_permlane32_swap_b32 v%d, v%d" % (vT, vT2))
    e("v_max_f32 v%d, v%d, v%d" % (vT, vT, vT2))
    if t > 0:
        e("v_max_f32 v%d, v%d, v%d" % (vT, vT, vM))
        e("v_sub_f32 v%d, v%d, v%d" % (vAl, vM, vT))
        e("v_mul_f32 v%d, s40, v%d" % (vAl, vAl))
        e("v_exp_f32 v%d, v%d" % (vAl, vAl))
    e("v_mov_b32 v%d, v%d" % (vM, vT))
    e("v_mul_f32 v%d, s40, v%d" % (vMC, vT))
    for i in range(32):
        e("v_fma_f32 v%d, v%d, s40, -v%d" % (S+i, S+i, vMC))
    for i in range(32):
        e("v_exp_f32 v%d, v%d" % (S+i, S+i))
    if t > 0:
        e("v_mul_f32 v%d, v%d, v%d" % (vL, vL, vAl))
        for i in range(64):
            e("v_mul_f32 v%d, v%d, v%d" % (O+i, O+i, vAl))
        for i in range(32):
            e("v_add_f32 v%d, v%d, v%d" % (vL, vL, S+i))
    else:
        e("v_add_f32 v%d, v%d, v%d" % (vL, S, S+1))
        for i in range(2, 32):
            e("v_add_f32 v%d, v%d, v%d" % (vL, vL, S+i))
    for i in range(16):
        e("v_cvt_pk_bf16_f32 v%d, v%d, v%d" % (P+i, S+2*i, S+2*i+1))
    e("s_waitcnt lgkmcnt(0)")
    e("s_nop 1")
    for ks in range(4):
        for db in range(4):
            a = (db*4+ks)*4
            o = O+16*db
            if t == 0 and ks == 0:
                e("v_mfma_f32_32x32x16_bf16 v[%d:%d], a[%d:%d], v[%d:%d], 0" % (o, o+15, a, a+3, P+4*ks, P+4*ks+3))
            else:
                e("v_mfma_f32_32x32x16_bf16 v[%d:%d], a[%d:%d], v[%d:%d], v[%d:%d]" % (o, o+15, a, a+3, P+4*ks, P+4*ks+3, o, o+15))

c("===== epilogue")
e("s_nop 15")
e("v_mov_b32 v%d, v%d" % (vT2, vL))
e("s_nop 1")
e("v_permlane32_swap_b32 v%d, v%d" % (vL, vT2))
e("v_add_f32 v%d, v%d, v%d" % (vL, vL, vT2))
e("s_cmp_eq_u32 s36, s38")
e("s_cbranch_scc1 L_consumer")
e("s_lshl_b32 s45, s42, 2")
e("s_add_u32 s45, s45, s38")
e("s_mul_i32 s45, s45, 20480")
e("v_lshlrev_b32 v%d, 4, v%d" % (vX, vLane))
for i in range(16):
    e("buffer_store_dwordx4 v[%d:%d], v%d, s[32:35], s45 offen offset:%d sc0 sc1" % (O+4*i, O+4*i+3, vX, (i%4)*1024))
    if i % 4 == 3: e("s_add_u32 s45, s45, 4096")
e("v_lshlrev_b32 v%d, 3, v%d" % (vX, vLane))
e("v_mov_b32 v%d, v%d" % (vZ, vMC))
e("v_mov_b32 v%d, v%d" % (vW, vL))
e("buffer_store_dwordx2 v[%d:%d], v%d, s[32:35], s45 offen sc0 sc1" % (vZ, vW, vX))
e("s_waitcnt vmcnt(0)")
e("v_mov_b32 v%d, 1" % vX)
e("s_lshl_b32 s45, s37, 2")
e("v_mov_b32 v%d, s45" % vY)
e("v_cmp_eq_u32 vcc, 0, v%d" % vLane)
e("s_and_saveexec_b64 s[48:49], vcc")
e("global_atomic_add v%d, v%d, s[12:13] sc1" % (vY, vX))
e("s_branch L_end")

lab("L_consumer")
e("s_lshl_b32 s45, s37, 2")
e("v_mov_b32 v%d, s45" % vY)
lab("L_poll")
e("global_load_dword v%d, v%d, s[12:13] sc1" % (vX, vY))
e("s_waitcnt vmcnt(0)")
e("v_readfirstlane_b32 s46, v%d" % vX)
e("s_cmp_ge_u32 s46, 12")
e("s_cbranch_scc1 L_go")
e("s_sleep 2")
e("s_branch L_poll")
lab("L_go")
e("v_lshlrev_b32 v%d, 4, v%d" % (vX, vLane))
e("v_lshlrev_b32 v%d, 3, v%d" % (vY, vLane))
dst = [KF, Q, None]
for n in range(3):
    e("s_add_u32 s45, s38, %d" % (n+1))
    e("s_and_b32 s45, s45, 3")
    e("s_lshl_b32 s46, s42, 2")
    e("s_add_u32 s45, s45, s46")
    e("s_mul_i32 s45, s45, 20480")
    for i in range(16):
        if dst[n] is not None:
            e("buffer_load_dwordx4 v[%d:%d], v%d, s[32:35], s45 offen offset:%d sc0 sc1" % (dst[n]+4*i, dst[n]+4*i+3, vX, (i%4)*1024))
        else:
            e("buffer_load_dwordx4 a[%d:%d], v%d, s[32:35], s45 offen offset:%d sc0 sc1" % (4*i, 4*i+3, vX, (i%4)*1024))
        if i % 4 == 3: e("s_add_u32 s45, s45, 4096")
    e("buffer_load_dwordx2 v[%d:%d], v%d, s[32:35], s45 offen sc0 sc1" % (80+2*n, 81+2*n, vY))
e("s_waitcnt vmcnt(0)")
e("v_max3_f32 v%d, v%d, v80, v82" % (vT, vMC))
e("v_max_f32 v%d, v%d, v84" % (vT, vT))
e("v_sub_f32 v86, v%d, v%d" % (vMC, vT))
e("v_sub_f32 v87, v80, v%d" % vT)
e("v_sub_f32 v88, v82, v%d" % vT)
e("v_sub_f32 v89, v84, v%d" % vT)
for i in range(4):
    e("v_exp_f32 v%d, v%d" % (86+i, 86+i))
e("s_nop 0")
e("v_mul_f32 v%d, v%d, v86" % (vL, vL))
e("v_fmac_f32 v%d, v81, v87" % vL)
e("v_fmac_f32 v%d, v83, v88" % vL)
e("v_fmac_f32 v%d, v85, v89" % vL)
e("v_rcp_f32 v%d, v%d" % (vL, vL))
e("s_nop 0")
for i in range(4):
    e("v_mul_f32 v%d, v%d, v%d" % (86+i, 86+i, vL))
for i in range(64):
    e("v_accvgpr_read_b32 v%d, a%d" % (vT, i))
    e("v_mul_f32 v%d, v%d, v86" % (O+i, O+i))
    e("v_fmac_f32 v%d, v%d, v87" % (O+i, KF+i))
    e("v_fmac_f32 v%d, v%d, v88" % (O+i, Q+i))
    e("v_fmac_f32 v%d, v%d, v89" % (O+i, vT))
e("v_and_b32 v%d, 31, v%d" % (vX, vLane))
e("v_lshrrev_b32 v%d, 5, v%d" % (vY, vLane))
e("v_lshlrev_b32 v%d, 8, v%d" % (vX, vX))
e("v_lshl_add_u32 v%d, v%d, 3, v%d" % (vX, vY, vX))
for i in range(16):
    e("v_cvt_pk_bf16_f32 v%d, v%d, v%d" % (Q+2*i, O+4*i, O+4*i+1))
    e("v_cvt_pk_bf16_f32 v%d, v%d, v%d" % (Q+2*i+1, O+4*i+2, O+4*i+3))
for i in range(16):
    e("buffer_store_dwordx2 v[%d:%d], v%d, s[28:31], s43 offen offset:%d" % (Q+2*i, Q+2*i+1, vX, (i//4)*64 + (i%4)*16))
lab("L_end")
e("s_endpgm")

ftr = """
.section .rodata,"a"
.p2align 6
.amdhsa_kernel standalone__gqa_softmax__sampling_kernel
  .amdhsa_next_free_vgpr 320
  .amdhsa_next_free_sgpr 102
  .amdhsa_accum_offset 256
  .amdhsa_group_segment_fixed_size 0
  .amdhsa_kernarg_size 48
  .amdhsa_user_sgpr_count 2
  .amdhsa_user_sgpr_kernarg_segment_ptr 1
  .amdhsa_system_sgpr_workgroup_id_x 1
.end_amdhsa_kernel
"""
open("standalone__gqa_softmax__sampling.s", "w").write(hdr + "\n".join(L) + "\n" + ftr)
```

```python
import sys
A = sys.argv[1:]
L = []
def e(s): L.append("    " + s)
def lab(s): L.append(s + ":")
def c(s): L.append("    ; " + s)

NSTEP = 8
NSUB = NSTEP*4
NSLOT = 10
SLOT = 16384
NTFLAG = " nt"
STAMP = "stamp" in A

Q=16; S=48; P=64; O=72; KF=136; VF=168; KA=200; VA=208; KC=212; VC=220
vM=1; vL=2; vAl=3; vT=4; vT2=5; vMC=6; vKoff=7; vVoff=8; vLane=9; vX=10; vY=11; vZ=12; vW=13
NVGPR = 224

hdr = """; Kernarg layout for this problem (48 bytes, ptrs only, base s[0:1]):
; @launch grid=(256,1,1) block=(512,1,1) lds=163840
.amdgcn_target "amdgcn-amd-amdhsa--gfx950"
.text
.globl standalone__gqa_softmax__sampling_kernel
.p2align 8
.type standalone__gqa_softmax__sampling_kernel,@function
standalone__gqa_softmax__sampling_kernel:
"""
nstamp = [0]
def stamp():
    if not STAMP: return
    e("s_memrealtime s[%d:%d]" % (60+2*nstamp[0], 61+2*nstamp[0]))
    nstamp[0] += 1

e("s_cmp_ge_u32 s2, 256")
e("s_cbranch_scc1 L_end")
e("s_load_dwordx4 s[4:7], s[0:1], 0")
e("s_load_dwordx4 s[8:11], s[0:1], 16")
e("s_load_dwordx4 s[12:15], s[0:1], 32")
stamp()
e("v_and_b32 v%d, 63, v0" % vLane)
e("v_lshrrev_b32 v%d, 6, v0" % vX)
e("s_nop 0")
e("v_readfirstlane_b32 s36, v%d" % vX)
e("s_and_b32 s37, s2, 7")
e("s_lshr_b32 s41, s2, 5")
e("s_lshl_b32 s41, s41, 3")
e("s_or_b32 s37, s37, s41")
e("s_bfe_u32 s50, s2, 0x10003")
e("s_bfe_u32 s38, s2, 0x10004")
e("s_and_b32 s51, s36, 1")
e("s_lshr_b32 s52, s36, 1")
e("s_lshl_b32 s39, s37, 19")
e("s_lshl_b32 s41, s38, 18")
e("s_add_u32 s39, s39, s41")
e("s_mov_b32 s40, 0x3e0293ee")
e("s_waitcnt lgkmcnt(0)")
for (base, p, n) in ((16,6,33554432),(20,8,33554432),(24,4,2097152),(28,10,2097152),(32,14,268435456)):
    e("s_mov_b32 s%d, s%d" % (base, p))
    e("s_and_b32 s%d, s%d, 0xffff" % (base+1, p+1))
    e("s_mov_b32 s%d, %d" % (base+2, n))
    e("s_mov_b32 s%d, 0x00020000" % (base+3))
e("s_lshl_b32 s42, s37, 2")
e("s_lshl_b32 s41, s50, 1")
e("s_add_u32 s42, s42, s41")
e("s_add_u32 s42, s42, s51")
e("s_lshl_b32 s43, s42, 13")
e("v_and_b32 v%d, 31, v%d" % (vX, vLane))
e("v_lshlrev_b32 v%d, 8, v%d" % (vX, vX))
e("v_lshrrev_b32 v%d, 5, v%d" % (vY, vLane))
e("v_lshlrev_b32 v%d, 4, v%d" % (vZ, vY))
e("v_add_u32 v%d, v%d, v%d" % (vX, vX, vZ))
for t in range(8):
    e("buffer_load_dwordx4 v[%d:%d], v%d, s[24:27], s43 offen offset:%d" % (Q+4*t, Q+4*t+3, vX, 32*t))
e("v_lshrrev_b32 v%d, 4, v%d" % (vX, vLane))
e("v_and_b32 v%d, 15, v%d" % (vY, vLane))
e("s_lshl_b32 s44, s36, 2")
e("v_add_u32 v%d, s44, v%d" % (vZ, vX))
e("v_and_b32 v%d, 15, v%d" % (vT, vZ))
e("v_xor_b32 v%d, v%d, v%d" % (vW, vY, vT))
e("v_lshlrev_b32 v%d, 4, v%d" % (vW, vW))
e("v_lshl_add_u32 v%d, v%d, 8, v%d" % (vKoff, vZ, vW))
e("v_lshlrev_b32 v%d, 2, v%d" % (vW, vX))
e("v_xor_b32 v%d, v%d, v%d" % (vW, vY, vW))
e("v_lshlrev_b32 v%d, 4, v%d" % (vW, vW))
e("v_lshl_add_u32 v%d, v%d, 8, v%d" % (vVoff, vZ, vW))
e("s_lshl_b32 s45, s36, 10")

def issue_sub(t):
    if "nodma" in A: return
    slot = t % NSLOT
    e("s_add_u32 m0, s45, %d" % (slot*SLOT))
    e("s_add_u32 s46, s39, %d" % (t*8192))
    e("buffer_load_dwordx4 v%d, s[16:19], s46 offen%s lds" % (vKoff, NTFLAG))
    e("s_add_u32 m0, s45, %d" % (slot*SLOT + 8192))
    e("s_nop 0")
    e("buffer_load_dwordx4 v%d, s[20:23], s46 offen%s lds" % (vVoff, NTFLAG))

for t in range(NSLOT):
    issue_sub(t)

e("v_and_b32 v%d, 31, v%d" % (vX, vLane))
e("v_lshrrev_b32 v%d, 5, v%d" % (vY, vLane))
e("v_and_b32 v%d, 15, v%d" % (vZ, vLane))
for t in range(8):
    e("v_or_b32 v%d, %d, v%d" % (vW, 2*t, vY))
    e("v_xor_b32 v%d, v%d, v%d" % (vW, vW, vZ))
    e("v_lshlrev_b32 v%d, 4, v%d" % (vW, vW))
    e("v_lshl_add_u32 v%d, v%d, 8, v%d" % (KA+t, vX, vW))
e("v_lshrrev_b32 v%d, 5, v%d" % (vX, vLane))
e("v_bfe_u32 v%d, v%d, 2, 2" % (vY, vLane))
e("v_lshl_add_u32 v%d, v%d, 2, v%d" % (vZ, vX, vY))
e("v_lshlrev_b32 v%d, 8, v%d" % (vZ, vZ))
e("v_bfe_u32 v%d, v%d, 4, 1" % (vX, vLane))
e("v_lshl_add_u32 v%d, v%d, 5, v%d" % (vZ, vX, vZ))
e("v_and_b32 v%d, 3, v%d" % (vX, vLane))
e("v_lshl_add_u32 v%d, v%d, 3, v%d" % (vZ, vX, vZ))
e("v_add_u32 v%d, 8192, v%d" % (vZ, vZ))
for db in range(4):
    e("v_xor_b32 v%d, %d, v%d" % (vW, db, vY))
    e("v_lshl_add_u32 v%d, v%d, 6, v%d" % (VA+db, vW, vZ))

issued = NSLOT
for s in range(NSTEP):
    c("===== step %d" % s)
    need = 4*s+3
    e("s_waitcnt vmcnt(%d)" % ((issued - 1 - need)*2))
    e("s_barrier")
    stamp()
    if s >= 1:
        for k in range(4):
            if issued < NSUB:
                issue_sub(issued); issued += 1
    if "nocompute" in A: continue
    e("s_add_u32 s47, s52, %d" % (4*s))
    e("s_mul_i32 s48, s47, 13")
    e("s_lshr_b32 s48, s48, 7")
    e("s_mul_i32 s48, s48, 10")
    e("s_sub_u32 s47, s47, s48")
    e("s_lshl_b32 s47, s47, 14")
    for k in range(8):
        e("v_add_u32 v%d, s47, v%d" % (KC+k, KA+k))
    for k in range(4):
        e("v_add_u32 v%d, s47, v%d" % (VC+k, VA+k))
    for k in range(8):
        f = KF + k*4
        e("ds_read_b128 v[%d:%d], v%d" % (f, f+3, KC+k))
    for db in range(4):
        for ks in range(2):
            for u in range(2):
                a = VF + (db*2+ks)*4 + 2*u
                e("ds_read_b64_tr_b16 v[%d:%d], v%d offset:%d" % (a, a+1, VC+db, (ks*16+u*8)*256))
    for k in range(8):
        f = KF + k*4
        e("s_waitcnt lgkmcnt(%d)" % min(15, 16 + 7 - k))
        if k == 0:
            e("v_mfma_f32_32x32x16_bf16 v[%d:%d], v[%d:%d], v[%d:%d], 0" % (S, S+15, f, f+3, Q, Q+3))
        else:
            e("v_mfma_f32_32x32x16_bf16 v[%d:%d], v[%d:%d], v[%d:%d], v[%d:%d]" % (S, S+15, f, f+3, Q+4*k, Q+4*k+3, S, S+15))
    e("s_nop 15")
    e("v_max3_f32 v%d, v%d, v%d, v%d" % (vT, S, S+1, S+2))
    for i in range(3, 15, 2):
        e("v_max3_f32 v%d, v%d, v%d, v%d" % (vT, vT, S+i, S+i+1))
    e("v_max_f32 v%d, v%d, v%d" % (vT, vT, S+15))
    e("v_mov_b32 v%d, v%d" % (vT2, vT))
    e("s_nop 1")
    e("v_permlane32_swap_b32 v%d, v%d" % (vT, vT2))
    e("v_max_f32 v%d, v%d, v%d" % (vT, vT, vT2))
    if s > 0:
        e("v_max_f32 v%d, v%d, v%d" % (vT, vT, vM))
        e("v_sub_f32 v%d, v%d, v%d" % (vAl, vM, vT))
        e("v_mul_f32 v%d, s40, v%d" % (vAl, vAl))
        e("v_exp_f32 v%d, v%d" % (vAl, vAl))
    e("v_mov_b32 v%d, v%d" % (vM, vT))
    e("v_mul_f32 v%d, s40, v%d" % (vMC, vT))
    for i in range(16):
        e("v_fma_f32 v%d, v%d, s40, -v%d" % (S+i, S+i, vMC))
    for i in range(16):
        e("v_exp_f32 v%d, v%d" % (S+i, S+i))
    if s > 0:
        e("v_mul_f32 v%d, v%d, v%d" % (vL, vL, vAl))
        e("v_mov_b32 v%d, v%d" % (vT2, vAl))
        e("v_mov_b32 v%d, v%d" % (vT, vAl))
        for i in range(32):
            e("v_pk_mul_f32 v[%d:%d], v[%d:%d], v[%d:%d]" % (O+2*i, O+2*i+1, O+2*i, O+2*i+1, vT, vT2))
        for i in range(16):
            e("v_add_f32 v%d, v%d, v%d" % (vL, vL, S+i))
    else:
        e("v_add_f32 v%d, v%d, v%d" % (vL, S, S+1))
        for i in range(2, 16):
            e("v_add_f32 v%d, v%d, v%d" % (vL, vL, S+i))
    for i in range(8):
        e("v_cvt_pk_bf16_f32 v%d, v%d, v%d" % (P+i, S+2*i, S+2*i+1))
    e("s_waitcnt lgkmcnt(0)")
    e("s_nop 1")
    for ks in range(2):
        for db in range(4):
            a = VF + (db*2+ks)*4
            o = O+16*db
            if s == 0 and ks == 0:
                e("v_mfma_f32_32x32x16_bf16 v[%d:%d], v[%d:%d], v[%d:%d], 0" % (o, o+15, a, a+3, P+4*ks, P+4*ks+3))
            else:
                e("v_mfma_f32_32x32x16_bf16 v[%d:%d], v[%d:%d], v[%d:%d], v[%d:%d]" % (o, o+15, a, a+3, P+4*ks, P+4*ks+3, o, o+15))

def dump_stamps():
    if not STAMP: return
    n = nstamp[0]
    e("s_cmp_lg_u32 s36, 0")
    e("s_cbranch_scc1 L_nost%d" % n)
    e("s_waitcnt lgkmcnt(0)")
    e("s_lshl_b32 s47, s2, 8")
    e("s_add_u32 s47, s47, 0x4000000")
    for i in range(n):
        e("v_mov_b32 v%d, s%d" % (vX, 60+2*i))
        e("v_mov_b32 v%d, %d" % (vY, 4*i))
        e("buffer_store_dword v%d, v%d, s[32:35], s47 offen" % (vX, vY))
    lab("L_nost%d" % n)

if "nocomb" in A:
    stamp(); dump_stamps()
    e("s_endpgm")
c("===== merge in LDS")
e("s_nop 15")
e("v_mov_b32 v%d, v%d" % (vT2, vL))
e("s_nop 1")
e("v_permlane32_swap_b32 v%d, v%d" % (vL, vT2))
e("v_add_f32 v%d, v%d, v%d" % (vL, vL, vT2))
e("s_barrier")
stamp()
e("s_lshl_b32 s47, s36, 14")
e("v_lshlrev_b32 v%d, 4, v%d" % (vX, vLane))
e("v_add_u32 v%d, s47, v%d" % (vY, vX))
for i in range(16):
    e("ds_write_b128 v%d, v[%d:%d] offset:%d" % (vY, O+4*i, O+4*i+3, i*1024))
e("s_lshl_b32 s47, s36, 9")
e("v_lshlrev_b32 v%d, 3, v%d" % (vZ, vLane))
e("v_add_u32 v%d, s47, v%d" % (vW, vZ))
e("v_add_u32 v%d, 131072, v%d" % (vW, vW))
e("v_mov_b32 v%d, v%d" % (vT, vMC))
e("v_mov_b32 v%d, v%d" % (vT2, vL))
e("ds_write_b64 v%d, v[%d:%d]" % (vW, vT, vT2))
e("s_waitcnt lgkmcnt(0)")
e("s_barrier")
e("s_lshl_b32 s47, s51, 14")
e("s_lshl_b32 s48, s52, 12")
e("s_add_u32 s47, s47, s48")
e("v_add_u32 v%d, s47, v%d" % (vY, vX))
e("v_add_u32 v%d, 65536, v%d" % (vW, vY))
for k in range(4):
    for i in range(4):
        r = KF + (k*4+i)*4
        e("ds_read_b128 v[%d:%d], v%d offset:%d" % (r, r+3, vY if k < 2 else vW, (k%2)*32768 + i*1024))
e("s_lshl_b32 s47, s51, 9")
e("v_add_u32 v%d, s47, v%d" % (vW, vZ))
e("v_add_u32 v%d, 131072, v%d" % (vW, vW))
for k in range(4):
    e("ds_read_b64 v[%d:%d], v%d offset:%d" % (Q+2*k, Q+2*k+1, vW, k*1024))
e("s_waitcnt lgkmcnt(0)")
e("v_max3_f32 v%d, v%d, v%d, v%d" % (vT, Q, Q+2, Q+4))
e("v_max_f32 v%d, v%d, v%d" % (vMC, vT, Q+6))
for k in range(4):
    e("v_sub_f32 v%d, v%d, v%d" % (Q+8+k, Q+2*k, vMC))
for k in range(4):
    e("v_exp_f32 v%d, v%d" % (Q+8+k, Q+8+k))
e("s_nop 0")
e("v_mul_f32 v%d, v%d, v%d" % (vL, Q+1, Q+8))
for k in range(1,4):
    e("v_fmac_f32 v%d, v%d, v%d" % (vL, Q+2*k+1, Q+8+k))
for i in range(16):
    e("v_mul_f32 v%d, v%d, v%d" % (O+i, KF+i, Q+8))
    for k in range(1,4):
        e("v_fmac_f32 v%d, v%d, v%d" % (O+i, KF+16*k+i, Q+8+k))
stamp()
e("s_cmp_eq_u32 s51, s38")
e("s_cbranch_scc1 L_consumer")
e("s_xor_b32 s47, s2, 16")
e("s_lshl_b32 s48, s47, 2")
e("s_add_u32 s48, s48, s52")
e("s_lshl_b32 s48, s48, 13")
for i in range(4):
    e("buffer_store_dwordx4 v[%d:%d], v%d, s[32:35], s48 offen offset:%d sc0 sc1" % (O+4*i, O+4*i+3, vX, i*1024))
e("s_add_u32 s48, s48, 4096")
e("v_mov_b32 v%d, v%d" % (vT, vMC))
e("v_mov_b32 v%d, v%d" % (vT2, vL))
e("buffer_store_dwordx2 v[%d:%d], v%d, s[32:35], s48 offen sc0 sc1" % (vT, vT2, vZ))
e("s_waitcnt vmcnt(0)")
e("s_and_b32 s48, s47, 3")
e("s_lshl_b32 s48, s48, 3")
e("s_lshl_b32 s49, 1, s48")
e("s_lshr_b32 s47, s47, 2")
e("s_lshl_b32 s47, s47, 2")
e("v_mov_b32 v%d, s49" % vX)
e("v_mov_b32 v%d, s47" % vY)
e("v_cmp_eq_u32 vcc, 0, v%d" % vLane)
e("s_and_saveexec_b64 s[54:55], vcc")
e("global_atomic_add v%d, v%d, s[12:13] sc1" % (vY, vX))
e("s_branch L_end")
lab("L_consumer")
e("s_lshr_b32 s47, s2, 2")
e("s_lshl_b32 s47, s47, 2")
e("v_mov_b32 v%d, s47" % vY)
e("s_and_b32 s48, s2, 3")
e("s_lshl_b32 s48, s48, 3")
e("s_add_u32 s48, s48, 0x80000")
lab("L_poll")
e("global_load_dword v%d, v%d, s[12:13] sc1" % (vW, vY))
e("s_waitcnt vmcnt(0)")
e("v_readfirstlane_b32 s46, v%d" % vW)
e("s_bfe_u32 s46, s46, s48")
e("s_cmp_ge_u32 s46, 4")
e("s_cbranch_scc1 L_go")
e("s_sleep 1")
e("s_branch L_poll")
lab("L_go")
stamp()
e("s_lshl_b32 s48, s2, 2")
e("s_add_u32 s48, s48, s52")
e("s_lshl_b32 s48, s48, 13")
for i in range(4):
    e("buffer_load_dwordx4 v[%d:%d], v%d, s[32:35], s48 offen offset:%d sc0 sc1" % (KF+4*i, KF+4*i+3, vX, i*1024))
e("s_add_u32 s48, s48, 4096")
e("buffer_load_dwordx2 v[%d:%d], v%d, s[32:35], s48 offen sc0 sc1" % (Q, Q+1, vZ))
e("s_waitcnt vmcnt(0)")
e("v_max_f32 v%d, v%d, v%d" % (vT, vMC, Q))
e("v_sub_f32 v%d, v%d, v%d" % (Q+2, vMC, vT))
e("v_sub_f32 v%d, v%d, v%d" % (Q+3, Q, vT))
e("v_exp_f32 v%d, v%d" % (Q+2, Q+2))
e("v_exp_f32 v%d, v%d" % (Q+3, Q+3))
e("s_nop 0")
e("v_mul_f32 v%d, v%d, v%d" % (vL, vL, Q+2))
e("v_fmac_f32 v%d, v%d, v%d" % (vL, Q+1, Q+3))
e("v_rcp_f32 v%d, v%d" % (vL, vL))
e("s_nop 0")
e("v_mul_f32 v%d, v%d, v%d" % (Q+2, Q+2, vL))
e("v_mul_f32 v%d, v%d, v%d" % (Q+3, Q+3, vL))
for i in range(16):
    e("v_mul_f32 v%d, v%d, v%d" % (O+i, O+i, Q+2))
    e("v_fmac_f32 v%d, v%d, v%d" % (O+i, KF+i, Q+3))
e("v_and_b32 v%d, 31, v%d" % (vX, vLane))
e("v_lshrrev_b32 v%d, 5, v%d" % (vY, vLane))
e("v_lshlrev_b32 v%d, 8, v%d" % (vX, vX))
e("v_lshl_add_u32 v%d, v%d, 3, v%d" % (vX, vY, vX))
e("s_lshl_b32 s47, s52, 6")
e("s_add_u32 s47, s47, s43")
for i in range(4):
    e("v_cvt_pk_bf16_f32 v%d, v%d, v%d" % (Q+8+2*i, O+4*i, O+4*i+1))
    e("v_cvt_pk_bf16_f32 v%d, v%d, v%d" % (Q+8+2*i+1, O+4*i+2, O+4*i+3))
for i in range(4):
    e("buffer_store_dwordx2 v[%d:%d], v%d, s[28:31], s47 offen offset:%d" % (Q+8+2*i, Q+8+2*i+1, vX, i*16))
stamp()
dump_stamps()
lab("L_end")
e("s_endpgm")

ftr = """
.section .rodata,"a"
.p2align 6
.amdhsa_kernel standalone__gqa_softmax__sampling_kernel
  .amdhsa_next_free_vgpr %d
  .amdhsa_next_free_sgpr 102
  .amdhsa_accum_offset %d
  .amdhsa_group_segment_fixed_size 0
  .amdhsa_kernarg_size 48
  .amdhsa_user_sgpr_count 2
  .amdhsa_user_sgpr_kernarg_segment_ptr 1
  .amdhsa_system_sgpr_workgroup_id_x 1
.end_amdhsa_kernel
""" % (NVGPR, NVGPR)
open("standalone__gqa_softmax__sampling.s", "w").write(hdr + "\n".join(L) + "\n" + ftr)
```

```python
import sys, re
A = sys.argv[1:]
L = []
def e(s): L.append("    " + s)
def lab(s): L.append(s + ":")
def c(s): L.append("    ; " + s)

NSTEP = 8
NTFLAG = " nt"
STAMP = "stamp" in A
KGB = 40960

Q=16; S0=48; S1=64; P=80; O=88; KF=152; VF=184; KA=216; VA=224
vM=1; vL=2; vAl=3; vT=4; vT2=5; vMC=6; vKoff=7; vVoff=8; vLane=9; vX=10; vY=11; vZ=12; vW=13; vRdy=14
NVGPR = 228
FLAGS = 0x1000000

hdr = """; Kernarg layout for this problem (48 bytes, ptrs only, base s[0:1]):
; @launch grid=(256,1,1) block=(512,1,1) lds=163840
.amdgcn_target "amdgcn-amd-amdhsa--gfx950"
.text
.globl standalone__gqa_softmax__sampling_kernel
.p2align 8
.type standalone__gqa_softmax__sampling_kernel,@function
standalone__gqa_softmax__sampling_kernel:
"""
nstamp = [0]
def stamp():
    if not STAMP: return
    e("s_memrealtime s[%d:%d]" % (60+2*nstamp[0], 61+2*nstamp[0]))
    nstamp[0] += 1

e("s_cmp_ge_u32 s2, 256")
e("s_cbranch_scc1 L_end")
e("s_load_dwordx4 s[4:7], s[0:1], 0")
e("s_load_dwordx4 s[8:11], s[0:1], 16")
e("s_load_dwordx4 s[12:15], s[0:1], 32")
stamp()
e("v_and_b32 v%d, 63, v0" % vLane)
e("v_lshrrev_b32 v%d, 6, v0" % vX)
e("s_nop 0")
e("v_readfirstlane_b32 s36, v%d" % vX)
e("s_and_b32 s37, s2, 7")
e("s_lshr_b32 s41, s2, 5")
e("s_lshl_b32 s41, s41, 3")
e("s_or_b32 s37, s37, s41")
e("s_bfe_u32 s50, s2, 0x10003")
e("s_bfe_u32 s38, s2, 0x10004")
e("s_and_b32 s51, s36, 1")
e("s_lshr_b32 s52, s36, 1")
e("s_lshl_b32 s39, s37, 19")
e("s_lshl_b32 s41, s38, 18")
e("s_add_u32 s39, s39, s41")
e("s_mov_b32 s40, 0x3e0293ee")
e("s_waitcnt lgkmcnt(0)")
for (base, p, n) in ((16,6,33554432),(20,8,33554432),(24,4,2097152),(28,10,2097152),(32,14,268435456)):
    e("s_mov_b32 s%d, s%d" % (base, p))
    e("s_and_b32 s%d, s%d, 0xffff" % (base+1, p+1))
    e("s_mov_b32 s%d, %d" % (base+2, n))
    e("s_mov_b32 s%d, 0x00020000" % (base+3))
e("s_lshl_b32 s42, s37, 2")
e("s_lshl_b32 s41, s50, 1")
e("s_add_u32 s42, s42, s41")
e("s_add_u32 s42, s42, s51")
e("s_lshl_b32 s43, s42, 13")
e("v_lshrrev_b32 v%d, 4, v%d" % (vX, vLane))
e("v_and_b32 v%d, 15, v%d" % (vY, vLane))
e("s_lshl_b32 s44, s36, 2")
e("v_add_u32 v%d, s44, v%d" % (vZ, vX))
e("v_and_b32 v%d, 15, v%d" % (vT, vZ))
e("v_xor_b32 v%d, v%d, v%d" % (vW, vY, vT))
e("v_lshlrev_b32 v%d, 4, v%d" % (vW, vW))
e("v_lshl_add_u32 v%d, v%d, 8, v%d" % (vKoff, vZ, vW))
e("v_lshlrev_b32 v%d, 2, v%d" % (vW, vX))
e("v_xor_b32 v%d, v%d, v%d" % (vW, vY, vW))
e("v_lshlrev_b32 v%d, 4, v%d" % (vW, vW))
e("v_lshl_add_u32 v%d, v%d, 8, v%d" % (vVoff, vZ, vW))
e("s_lshl_b32 s45, s36, 10")

vm = []
def vm_wait(tag):
    idx = max(i for i,t in enumerate(vm) if t == tag)
    e("s_waitcnt vmcnt(%d)" % (len(vm)-1-idx))

def issue(kind, s):
    if s >= NSTEP: return
    for kg in range(4):
        off = kg*KGB + ((s%2)*8192 if kind == 'K' else 16384 + (s%3)*8192)
        e("s_add_u32 m0, s45, %d" % off)
        e("s_add_u32 s46, s39, %d" % ((4*s+kg)*8192))
        if "nodma" not in A:
            e("buffer_load_dwordx4 v%d, s[%d:%d], s46 offen%s lds" % (vKoff if kind=='K' else vVoff, 16 if kind=='K' else 20, 19 if kind=='K' else 23, NTFLAG))
        vm.append((kind, s))

e("s_cmp_lg_u32 s36, 0")
e("s_cbranch_scc1 L_noclr")
e("v_mov_b32 v%d, 0" % S0)
e("v_mov_b32 v%d, 0" % (S0+1))
e("v_mov_b32 v%d, 0" % (S0+2))
e("v_mov_b32 v%d, 0" % (S0+3))
e("v_mov_b32 v%d, 0" % vX)
e("s_lshl_b32 s47, s2, 7")
e("s_add_u32 s47, s47, %d" % FLAGS)
e("v_cmp_eq_u32 vcc, 0, v%d" % vLane)
e("s_and_saveexec_b64 s[54:55], vcc")
e("buffer_store_dwordx4 v[%d:%d], v%d, s[32:35], s47 offen sc0 sc1" % (S0, S0+3, vX))
e("s_mov_b64 exec, s[54:55]")
lab("L_noclr")

issue('K', 0); issue('K', 1); issue('V', 0)
e("v_and_b32 v%d, 31, v%d" % (vX, vLane))
e("v_lshlrev_b32 v%d, 8, v%d" % (vX, vX))
e("v_lshrrev_b32 v%d, 5, v%d" % (vY, vLane))
e("v_lshlrev_b32 v%d, 4, v%d" % (vZ, vY))
e("v_add_u32 v%d, v%d, v%d" % (vX, vX, vZ))
for t in range(8):
    e("buffer_load_dwordx4 v[%d:%d], v%d, s[24:27], s43 offen offset:%d" % (Q+4*t, Q+4*t+3, vX, 32*t))
    vm.append(('Q', 0))
issue('V', 1); issue('V', 2)

e("s_mul_i32 s47, s52, %d" % KGB)
e("v_and_b32 v%d, 31, v%d" % (vX, vLane))
e("v_lshrrev_b32 v%d, 5, v%d" % (vY, vLane))
e("v_and_b32 v%d, 15, v%d" % (vZ, vLane))
for t in range(8):
    e("v_or_b32 v%d, %d, v%d" % (vW, 2*t, vY))
    e("v_xor_b32 v%d, v%d, v%d" % (vW, vW, vZ))
    e("v_lshlrev_b32 v%d, 4, v%d" % (vW, vW))
    e("v_lshl_add_u32 v%d, v%d, 8, v%d" % (KA+t, vX, vW))
    e("v_add_u32 v%d, s47, v%d" % (KA+t, KA+t))
e("v_lshrrev_b32 v%d, 5, v%d" % (vX, vLane))
e("v_bfe_u32 v%d, v%d, 2, 2" % (vY, vLane))
e("v_lshl_add_u32 v%d, v%d, 2, v%d" % (vZ, vX, vY))
e("v_lshlrev_b32 v%d, 8, v%d" % (vZ, vZ))
e("v_bfe_u32 v%d, v%d, 4, 1" % (vX, vLane))
e("v_lshl_add_u32 v%d, v%d, 5, v%d" % (vZ, vX, vZ))
e("v_and_b32 v%d, 3, v%d" % (vX, vLane))
e("v_lshl_add_u32 v%d, v%d, 3, v%d" % (vZ, vX, vZ))
e("v_add_u32 v%d, s47, v%d" % (vZ, vZ))
for db in range(4):
    e("v_xor_b32 v%d, %d, v%d" % (vW, db, vY))
    e("v_lshl_add_u32 v%d, v%d, 6, v%d" % (VA+db, vW, vZ))

def softmaxA(s):
    S = S0 if s%2==0 else S1
    r = []
    r.append("v_max3_f32 v%d, v%d, v%d, v%d" % (vT, S, S+1, S+2))
    for i in range(3, 15, 2):
        r.append("v_max3_f32 v%d, v%d, v%d, v%d" % (vT, vT, S+i, S+i+1))
    r.append("v_max_f32 v%d, v%d, v%d" % (vT, vT, S+15))
    r.append("v_mov_b32 v%d, v%d" % (vT2, vT))
    r.append("s_nop 1")
    r.append("v_permlane32_swap_b32 v%d, v%d" % (vT, vT2))
    r.append("v_max_f32 v%d, v%d, v%d" % (vT, vT, vT2))
    if s > 0:
        r.append("v_max_f32 v%d, v%d, v%d" % (vT, vT, vM))
        r.append("v_sub_f32 v%d, v%d, v%d" % (vAl, vM, vT))
        r.append("v_mul_f32 v%d, s40, v%d" % (vAl, vAl))
        r.append("v_exp_f32 v%d, v%d" % (vAl, vAl))
    r.append("v_mov_b32 v%d, v%d" % (vM, vT))
    r.append("v_mul_f32 v%d, s40, v%d" % (vMC, vT))
    for i in range(16):
        r.append("v_fma_f32 v%d, v%d, s40, -v%d" % (S+i, S+i, vMC))
    for i in range(16):
        r.append("v_exp_f32 v%d, v%d" % (S+i, S+i))
    return r
def softmaxB(s):
    S = S0 if s%2==0 else S1
    r = []
    if s > 0:
        r.append("v_mul_f32 v%d, v%d, v%d" % (vL, vL, vAl))
        r.append("v_mov_b32 v%d, v%d" % (vT2, vAl))
        r.append("v_mov_b32 v%d, v%d" % (vT, vAl))
        for i in range(32):
            r.append("v_pk_mul_f32 v[%d:%d], v[%d:%d], v[%d:%d]" % (O+2*i, O+2*i+1, O+2*i, O+2*i+1, vT, vT2))
        for i in range(16):
            r.append("v_add_f32 v%d, v%d, v%d" % (vL, vL, S+i))
    else:
        r.append("v_add_f32 v%d, v%d, v%d" % (vL, S, S+1))
        for i in range(2, 16):
            r.append("v_add_f32 v%d, v%d, v%d" % (vL, vL, S+i))
    for i in range(8):
        r.append("v_cvt_pk_bf16_f32 v%d, v%d, v%d" % (P+i, S+2*i, S+2*i+1))
    return r

def cost(ins):
    if ins.startswith("v_exp"): return 2
    if ins.startswith("s_nop"): return 1
    return 1
def interleave(mf, va, lead=0):
    tot = sum(cost(x) for x in va)
    n = len(mf)
    vi = 0; acc = 0
    for i,(pre, m) in enumerate(mf):
        for p in pre: e(p)
        e(m)
        target = tot*(i+1)/n
        while vi < len(va) and acc + cost(va[vi]) <= target + 0.01:
            e(va[vi]); acc += cost(va[vi]); vi += 1
    while vi < len(va):
        e(va[vi]); vi += 1

for ph in range(-1, NSTEP):
    c("===== phase %d" % ph)
    if ph+1 < NSTEP:
        tags = [('K', ph+1)]
        if ph >= 0: tags.append(('V', ph))
        if ph == -1: tags.append(('Q', 0))
    else:
        tags = [('V', ph)]
    idx = max(max(i for i,t in enumerate(vm) if t == tg) for tg in tags)
    e("s_waitcnt vmcnt(%d)" % (len(vm)-1-idx))
    if ph == -1:
        e("s_cmp_lg_u32 s36, 0")
        e("s_cbranch_scc1 L_nordy")
        e("s_and_b32 s48, s2, 3")
        e("s_lshl_b32 s48, s48, 3")
        e("s_lshl_b32 s49, 1, s48")
        e("s_lshr_b32 s47, s2, 2")
        e("s_lshl_b32 s47, s47, 2")
        e("v_mov_b32 v%d, s49" % vX)
        e("v_mov_b32 v%d, s47" % vY)
        e("v_cmp_eq_u32 vcc, 0, v%d" % vLane)
        e("s_and_saveexec_b64 s[54:55], vcc")
        e("global_atomic_add v%d, v%d, s[12:13] sc1" % (vY, vX))
        e("s_mov_b64 exec, s[54:55]")
        lab("L_nordy")
    e("s_barrier")
    stamp()
    if ph >= 0:
        issue('K', ph+2); issue('V', ph+2)
    if "nocompute" in A: continue
    nk = 0
    if ph+1 < NSTEP:
        for k in range(8):
            f = KF + k*4
            e("ds_read_b128 v[%d:%d], v%d offset:%d" % (f, f+3, KA+k, ((ph+1)%2)*8192)); nk += 1
    nv = 0
    if ph >= 0:
        for ks in range(2):
            for db in range(4):
                for u in range(2):
                    a = VF + (db*2+ks)*4 + 2*u
                    e("ds_read_b64_tr_b16 v[%d:%d], v%d offset:%d" % (a, a+1, VA+db, 16384 + (ph%3)*8192 + (ks*16+u*8)*256)); nv += 1
    if ph+1 < NSTEP:
        S = S0 if (ph+1)%2==0 else S1
        mf = []
        for k in range(8):
            f = KF + k*4
            pre = ["s_waitcnt lgkmcnt(%d)" % min(15, nv + 7 - k)]
            if k == 0:
                m = "v_mfma_f32_32x32x16_bf16 v[%d:%d], v[%d:%d], v[%d:%d], 0" % (S, S+15, f, f+3, Q, Q+3)
            else:
                m = "v_mfma_f32_32x32x16_bf16 v[%d:%d], v[%d:%d], v[%d:%d], v[%d:%d]" % (S, S+15, f, f+3, Q+4*k, Q+4*k+3, S, S+15)
            mf.append((pre, m))
        interleave(mf, softmaxB(ph) if ph >= 0 else [])
    else:
        for x in softmaxB(ph): e(x)
    if ph >= 0:
        mf = []
        first = True
        for ks in range(2):
            for db in range(4):
                a = VF + (db*2+ks)*4
                o = O+16*db
                pre = []
                if first: pre = ["s_waitcnt lgkmcnt(0)", "s_nop 1"]; first = False
                if ph == 0 and ks == 0:
                    m = "v_mfma_f32_32x32x16_bf16 v[%d:%d], v[%d:%d], v[%d:%d], 0" % (o, o+15, a, a+3, P+4*ks, P+4*ks+3)
                else:
                    m = "v_mfma_f32_32x32x16_bf16 v[%d:%d], v[%d:%d], v[%d:%d], v[%d:%d]" % (o, o+15, a, a+3, P+4*ks, P+4*ks+3, o, o+15)
                mf.append((pre, m))
        va = softmaxA(ph+1) if ph+1 < NSTEP else []
        for p in mf[0][0]: e(p)
        e(mf[0][1]); e(mf[1][1])
        e("s_nop 9")
        interleave(mf[2:], va)
    else:
        e("s_nop 15")
        for x in softmaxA(0): e(x)

def dump_stamps():
    if not STAMP: return
    n = nstamp[0]
    e("s_cmp_lg_u32 s36, 0")
    e("s_cbranch_scc1 L_nost%d" % n)
    e("s_waitcnt lgkmcnt(0)")
    e("s_lshl_b32 s47, s2, 8")
    e("s_add_u32 s47, s47, 0x4000000")
    for i in range(n):
        e("v_mov_b32 v%d, s%d" % (vX, 60+2*i))
        e("v_mov_b32 v%d, %d" % (vY, 4*i))
        e("buffer_store_dword v%d, v%d, s[32:35], s47 offen" % (vX, vY))
    lab("L_nost%d" % n)

if "nocomb" in A:
    stamp(); dump_stamps()
    e("s_endpgm")
c("===== merge in LDS")
e("s_xor_b32 s56, s2, 16")
e("s_lshr_b32 s47, s56, 2")
e("s_lshl_b32 s47, s47, 2")
e("v_mov_b32 v%d, s47" % vY)
e("v_mov_b32 v15, s47")
e("global_load_dword v%d, v15, s[12:13] sc1" % (vRdy))
e("s_nop 15")
e("v_mov_b32 v%d, v%d" % (vT2, vL))
e("s_nop 1")
e("v_permlane32_swap_b32 v%d, v%d" % (vL, vT2))
e("v_add_f32 v%d, v%d, v%d" % (vL, vL, vT2))
e("s_barrier")
stamp()
e("s_lshl_b32 s47, s36, 14")
e("v_lshlrev_b32 v%d, 4, v%d" % (vX, vLane))
e("v_add_u32 v%d, s47, v%d" % (vY, vX))
for i in range(16):
    e("ds_write_b128 v%d, v[%d:%d] offset:%d" % (vY, O+4*i, O+4*i+3, i*1024))
e("s_lshl_b32 s47, s36, 9")
e("v_lshlrev_b32 v%d, 3, v%d" % (vZ, vLane))
e("v_add_u32 v%d, s47, v%d" % (vW, vZ))
e("v_add_u32 v%d, 131072, v%d" % (vW, vW))
e("v_mov_b32 v%d, v%d" % (vT, vMC))
e("v_mov_b32 v%d, v%d" % (vT2, vL))
e("ds_write_b64 v%d, v[%d:%d]" % (vW, vT, vT2))
e("s_waitcnt lgkmcnt(0)")
e("s_barrier")
e("s_lshl_b32 s47, s51, 14")
e("s_lshl_b32 s48, s52, 12")
e("s_add_u32 s47, s47, s48")
e("v_add_u32 v%d, s47, v%d" % (vY, vX))
e("v_add_u32 v%d, 65536, v%d" % (vW, vY))
for k in range(4):
    for i in range(4):
        r = KF + (k*4+i)*4
        e("ds_read_b128 v[%d:%d], v%d offset:%d" % (r, r+3, vY if k < 2 else vW, (k%2)*32768 + i*1024))
e("s_lshl_b32 s47, s51, 9")
e("v_add_u32 v%d, s47, v%d" % (vW, vZ))
e("v_add_u32 v%d, 131072, v%d" % (vW, vW))
for k in range(4):
    e("ds_read_b64 v[%d:%d], v%d offset:%d" % (Q+2*k, Q+2*k+1, vW, k*1024))
e("s_waitcnt lgkmcnt(0)")
e("v_max3_f32 v%d, v%d, v%d, v%d" % (vT, Q, Q+2, Q+4))
e("v_max_f32 v%d, v%d, v%d" % (vMC, vT, Q+6))
for k in range(4):
    e("v_sub_f32 v%d, v%d, v%d" % (Q+8+k, Q+2*k, vMC))
for k in range(4):
    e("v_exp_f32 v%d, v%d" % (Q+8+k, Q+8+k))
e("s_nop 0")
e("v_mul_f32 v%d, v%d, v%d" % (vL, Q+1, Q+8))
for k in range(1,4):
    e("v_fmac_f32 v%d, v%d, v%d" % (vL, Q+2*k+1, Q+8+k))
for i in range(16):
    e("v_mul_f32 v%d, v%d, v%d" % (O+i, KF+i, Q+8))
    for k in range(1,4):
        e("v_fmac_f32 v%d, v%d, v%d" % (O+i, KF+16*k+i, Q+8+k))
stamp()
e("s_cmp_eq_u32 s51, s38")
e("s_cbranch_scc1 L_consumer")
e("s_and_b32 s48, s56, 3")
e("s_lshl_b32 s48, s48, 3")
e("s_add_u32 s48, s48, 0x80000")
e("s_waitcnt vmcnt(0)")
lab("L_rdy")
e("v_readfirstlane_b32 s46, v%d" % vRdy)
e("s_bfe_u32 s46, s46, s48")
e("s_cmp_ge_u32 s46, 1")
e("s_cbranch_scc1 L_rdy_ok")
e("s_sleep 4")
e("global_load_dword v%d, v%d, s[12:13] sc1" % (vRdy, 15))
e("s_waitcnt vmcnt(0)")
e("s_branch L_rdy")
lab("L_rdy_ok")
e("s_lshl_b32 s48, s56, 2")
e("s_add_u32 s48, s48, s52")
e("s_lshl_b32 s48, s48, 13")
for i in range(4):
    e("buffer_store_dwordx4 v[%d:%d], v%d, s[32:35], s48 offen offset:%d sc0 sc1" % (O+4*i, O+4*i+3, vX, i*1024))
e("s_add_u32 s48, s48, 4096")
e("v_mov_b32 v%d, v%d" % (vT, vMC))
e("v_mov_b32 v%d, v%d" % (vT2, vL))
e("buffer_store_dwordx2 v[%d:%d], v%d, s[32:35], s48 offen sc0 sc1" % (vT, vT2, vZ))
e("s_waitcnt vmcnt(0)")
e("s_lshl_b32 s48, s56, 7")
e("s_lshl_b32 s47, s52, 2")
e("s_add_u32 s48, s48, s47")
e("s_add_u32 s48, s48, %d" % FLAGS)
e("v_mov_b32 v%d, 1" % vT)
e("v_mov_b32 v%d, 0" % vT2)
e("v_cmp_eq_u32 vcc, 0, v%d" % vLane)
e("s_and_saveexec_b64 s[54:55], vcc")
e("buffer_store_dword v%d, v%d, s[32:35], s48 offen sc0 sc1" % (vT, vT2))
e("s_branch L_end")
lab("L_consumer")
e("s_lshl_b32 s48, s2, 7")
e("s_lshl_b32 s47, s52, 2")
e("s_add_u32 s48, s48, s47")
e("s_add_u32 s48, s48, %d" % FLAGS)
e("v_mov_b32 v%d, 0" % vT2)
lab("L_poll")
e("buffer_load_dword v%d, v%d, s[32:35], s48 offen sc0 sc1" % (vW, vT2))
e("s_waitcnt vmcnt(0)")
e("v_readfirstlane_b32 s46, v%d" % vW)
e("s_cmp_eq_u32 s46, 1")
e("s_cbranch_scc1 L_go")
e("s_branch L_poll")
lab("L_go")
stamp()
e("s_lshl_b32 s48, s2, 2")
e("s_add_u32 s48, s48, s52")
e("s_lshl_b32 s48, s48, 13")
for i in range(4):
    e("buffer_load_dwordx4 v[%d:%d], v%d, s[32:35], s48 offen offset:%d sc0 sc1" % (KF+4*i, KF+4*i+3, vX, i*1024))
e("s_add_u32 s48, s48, 4096")
e("buffer_load_dwordx2 v[%d:%d], v%d, s[32:35], s48 offen sc0 sc1" % (Q, Q+1, vZ))
e("s_waitcnt vmcnt(0)")
e("v_max_f32 v%d, v%d, v%d" % (vT, vMC, Q))
e("v_sub_f32 v%d, v%d, v%d" % (Q+2, vMC, vT))
e("v_sub_f32 v%d, v%d, v%d" % (Q+3, Q, vT))
e("v_exp_f32 v%d, v%d" % (Q+2, Q+2))
e("v_exp_f32 v%d, v%d" % (Q+3, Q+3))
e("s_nop 0")
e("v_mul_f32 v%d, v%d, v%d" % (vL, vL, Q+2))
e("v_fmac_f32 v%d, v%d, v%d" % (vL, Q+1, Q+3))
e("v_rcp_f32 v%d, v%d" % (vL, vL))
e("s_nop 0")
e("v_mul_f32 v%d, v%d, v%d" % (Q+2, Q+2, vL))
e("v_mul_f32 v%d, v%d, v%d" % (Q+3, Q+3, vL))
for i in range(16):
    e("v_mul_f32 v%d, v%d, v%d" % (O+i, O+i, Q+2))
    e("v_fmac_f32 v%d, v%d, v%d" % (O+i, KF+i, Q+3))
e("v_and_b32 v%d, 31, v%d" % (vX, vLane))
e("v_lshrrev_b32 v%d, 5, v%d" % (vY, vLane))
e("v_lshlrev_b32 v%d, 8, v%d" % (vX, vX))
e("v_lshl_add_u32 v%d, v%d, 3, v%d" % (vX, vY, vX))
e("s_lshl_b32 s47, s52, 6")
e("s_add_u32 s47, s47, s43")
for i in range(4):
    e("v_cvt_pk_bf16_f32 v%d, v%d, v%d" % (Q+8+2*i, O+4*i, O+4*i+1))
    e("v_cvt_pk_bf16_f32 v%d, v%d, v%d" % (Q+8+2*i+1, O+4*i+2, O+4*i+3))
for i in range(4):
    e("buffer_store_dwordx2 v[%d:%d], v%d, s[28:31], s47 offen offset:%d" % (Q+8+2*i, Q+8+2*i+1, vX, i*16))
stamp()
dump_stamps()
lab("L_end")
e("s_endpgm")

ftr = """
.section .rodata,"a"
.p2align 6
.amdhsa_kernel standalone__gqa_softmax__sampling_kernel
  .amdhsa_next_free_vgpr %d
  .amdhsa_next_free_sgpr 102
  .amdhsa_accum_offset %d
  .amdhsa_group_segment_fixed_size 0
  .amdhsa_kernarg_size 48
  .amdhsa_user_sgpr_count 2
  .amdhsa_user_sgpr_kernarg_segment_ptr 1
  .amdhsa_system_sgpr_workgroup_id_x 1
.end_amdhsa_kernel
""" % (NVGPR, NVGPR)
open("standalone__gqa_softmax__sampling.s", "w").write(hdr + "\n".join(L) + "\n" + ftr)
```

```python
import sys, re
A = sys.argv[1:]
L = []
TAIL = []
def e(s): L.append("    " + s)
def lab(s): L.append(s + ":")
def c(s): L.append("    ; " + s)

NTFLAG = " nt"
STAMP = "stamp" in A
KGB = 40960

Q=16; S0=48; S1=64; P=80; O=88; KF=152; VF=184; KA=216; VA=224; VC=228
vM=1; vL=2; vAl=3; vT=4; vT2=5; vMC=6; vKoff=7; vVoff=8; vLane=9; vX=10; vY=11; vZ=12; vW=13; vRdy=14; vThr=232
NVGPR = 236
FLAGS = 0x1000000

hdr = """; Kernarg layout for this problem (48 bytes, ptrs only, base s[0:1]):
; @launch grid=(256,1,1) block=(512,1,1) lds=163840
.amdgcn_target "amdgcn-amd-amdhsa--gfx950"
.text
.globl standalone__gqa_softmax__sampling_kernel
.p2align 8
.type standalone__gqa_softmax__sampling_kernel,@function
standalone__gqa_softmax__sampling_kernel:
"""
nstamp = [0]
def stamp():
    if not STAMP: return
    e("s_memrealtime s[%d:%d]" % (70+2*nstamp[0], 71+2*nstamp[0]))
    nstamp[0] += 1

e("s_cmp_ge_u32 s2, 256")
e("s_cbranch_scc1 L_end")
e("s_load_dwordx4 s[4:7], s[0:1], 0")
e("s_load_dwordx4 s[8:11], s[0:1], 16")
e("s_load_dwordx4 s[12:15], s[0:1], 32")
stamp()
e("v_and_b32 v%d, 63, v0" % vLane)
e("v_lshrrev_b32 v%d, 6, v0" % vX)
e("s_nop 0")
e("v_readfirstlane_b32 s36, v%d" % vX)
e("s_and_b32 s37, s2, 7")
e("s_lshr_b32 s41, s2, 5")
e("s_lshl_b32 s41, s41, 3")
e("s_or_b32 s37, s37, s41")
e("s_bfe_u32 s50, s2, 0x10003")
e("s_bfe_u32 s38, s2, 0x10004")
e("s_and_b32 s51, s36, 1")
e("s_lshr_b32 s52, s36, 1")
e("s_lshl_b32 s39, s37, 19")
e("s_lshl_b32 s41, s38, 18")
e("s_add_u32 s39, s39, s41")
e("s_mov_b32 s40, 0x3e0293ee")
e("v_lshrrev_b32 v%d, 4, v%d" % (vX, vLane))
e("v_and_b32 v%d, 15, v%d" % (vY, vLane))
e("s_lshl_b32 s44, s36, 2")
e("v_add_u32 v%d, s44, v%d" % (vZ, vX))
e("v_and_b32 v%d, 15, v%d" % (vT, vZ))
e("v_xor_b32 v%d, v%d, v%d" % (vW, vY, vT))
e("v_lshlrev_b32 v%d, 4, v%d" % (vW, vW))
e("v_lshl_add_u32 v%d, v%d, 8, v%d" % (vKoff, vZ, vW))
e("v_lshlrev_b32 v%d, 2, v%d" % (vW, vX))
e("v_xor_b32 v%d, v%d, v%d" % (vW, vY, vW))
e("v_lshlrev_b32 v%d, 4, v%d" % (vW, vW))
e("v_lshl_add_u32 v%d, v%d, 8, v%d" % (vVoff, vZ, vW))
e("s_lshl_b32 s45, s36, 10")
e("s_lshl_b32 s42, s37, 2")
e("s_lshl_b32 s41, s50, 1")
e("s_add_u32 s42, s42, s41")
e("s_lshl_b32 s57, s42, 13")
e("s_add_u32 s42, s42, s51")
e("s_lshl_b32 s43, s42, 13")
e("s_waitcnt lgkmcnt(0)")
for (base, p, n) in ((24,4,2097152),(16,6,33554432),(20,8,33554432),(28,10,2097152),(32,14,268435456)):
    e("s_mov_b32 s%d, s%d" % (base, p))
    e("s_and_b32 s%d, s%d, 0xffff" % (base+1, p+1))
    e("s_mov_b32 s%d, %d" % (base+2, n))
    e("s_mov_b32 s%d, 0x00020000" % (base+3))

def dma(kind, ldsoff_imm, soff_sgpr, ldsoff_sgpr=None):
    if ldsoff_sgpr is None:
        e("s_add_u32 m0, s45, %d" % ldsoff_imm)
    else:
        e("s_add_u32 m0, %s, %d" % (ldsoff_sgpr, ldsoff_imm))
    e("s_nop 0")
    if "nodma" in A: return
    srd = {'K':16,'V':20,'Q':24}[kind]
    e("buffer_load_dwordx4 v%d, s[%d:%d], %s offen%s lds" % (vVoff if kind=='V' else vKoff, srd, srd+3, soff_sgpr, NTFLAG))

dma('Q', 32768, "s57")
e("s_add_u32 s46, s57, 8192")
dma('Q', KGB + 32768, "s46")
def issue_static(kind, s):
    for kg in range(4):
        off = kg*KGB + ((s%2)*8192 if kind == 'K' else 16384 + (s%3)*8192)
        e("s_add_u32 s46, s39, %d" % ((4*s+kg)*8192))
        dma(kind, off, "s46")
issue_static('K', 0); issue_static('K', 1); issue_static('V', 0); issue_static('V', 1)

e("s_cmp_lg_u32 s36, 0")
e("s_cbranch_scc1 L_noclr")
for i in range(4): e("v_mov_b32 v%d, 0" % (S0+i))
e("v_mov_b32 v%d, 0" % vX)
e("s_lshl_b32 s47, s2, 7")
e("s_add_u32 s47, s47, %d" % FLAGS)
e("v_cmp_eq_u32 vcc, 0, v%d" % vLane)
e("s_and_saveexec_b64 s[54:55], vcc")
e("buffer_store_dwordx4 v[%d:%d], v%d, s[32:35], s47 offen sc0 sc1" % (S0, S0+3, vX))
e("s_mov_b64 exec, s[54:55]")
lab("L_noclr")

e("s_mul_i32 s47, s52, %d" % KGB)
e("v_and_b32 v%d, 31, v%d" % (vX, vLane))
e("v_lshrrev_b32 v%d, 5, v%d" % (vY, vLane))
e("v_and_b32 v%d, 15, v%d" % (vZ, vLane))
for t in range(8):
    e("v_or_b32 v%d, %d, v%d" % (vW, 2*t, vY))
    e("v_xor_b32 v%d, v%d, v%d" % (vW, vW, vZ))
    e("v_lshlrev_b32 v%d, 4, v%d" % (vW, vW))
    e("v_lshl_add_u32 v%d, v%d, 8, v%d" % (KA+t, vX, vW))
e("s_mul_i32 s48, s51, %d" % KGB)
e("s_add_u32 s48, s48, 32768")
for t in range(8):
    e("v_add_u32 v%d, s48, v%d" % (S1+t, KA+t))
    e("v_add_u32 v%d, s47, v%d" % (KA+t, KA+t))
e("v_lshrrev_b32 v%d, 5, v%d" % (vX, vLane))
e("v_bfe_u32 v%d, v%d, 2, 2" % (vY, vLane))
e("v_lshl_add_u32 v%d, v%d, 2, v%d" % (vZ, vX, vY))
e("v_lshlrev_b32 v%d, 8, v%d" % (vZ, vZ))
e("v_bfe_u32 v%d, v%d, 4, 1" % (vX, vLane))
e("v_lshl_add_u32 v%d, v%d, 5, v%d" % (vZ, vX, vZ))
e("v_and_b32 v%d, 3, v%d" % (vX, vLane))
e("v_lshl_add_u32 v%d, v%d, 3, v%d" % (vZ, vX, vZ))
e("v_add_u32 v%d, s47, v%d" % (vZ, vZ))
e("v_add_u32 v%d, 16384, v%d" % (vZ, vZ))
for db in range(4):
    e("v_xor_b32 v%d, %d, v%d" % (vW, db, vY))
    e("v_lshl_add_u32 v%d, v%d, 6, v%d" % (VA+db, vW, vZ))
for i in range(64): e("v_mov_b32 v%d, 0" % (O+i))
e("v_mov_b32 v%d, 0" % vL)
e("v_mov_b32 v%d, 0xff800000" % vM)
e("v_mov_b32 v%d, 0xff800000" % vThr)
e("s_mov_b32 s60, 0")
e("s_mov_b32 s61, 0")
e("s_mov_b32 s62, 0")
e("s_mov_b32 s63, 16384")
e("s_add_u32 s58, s39, %d" % (2*32768))

uid = [0]
def softmaxA(S):
    r = []
    r.append("v_max3_f32 v%d, v%d, v%d, v%d" % (vT, S, S+1, S+2))
    for i in range(3, 15, 2):
        r.append("v_max3_f32 v%d, v%d, v%d, v%d" % (vT, vT, S+i, S+i+1))
    r.append("v_max_f32 v%d, v%d, v%d" % (vT, vT, S+15))
    r.append("v_mov_b32 v%d, v%d" % (vT2, vT))
    r.append("s_nop 1")
    r.append("v_permlane32_swap_b32 v%d, v%d" % (vT, vT2))
    r.append("v_max_f32 v%d, v%d, v%d" % (vT, vT, vT2))
    u = uid[0]; uid[0] += 1
    r.append("s_nop 0\n    v_cmp_gt_f32 vcc, v%d, v%d\n    s_nop 1\n    s_cbranch_vccnz L_rA%d\nL_bA%d:" % (vT, vThr, u, u))
    TAIL.extend(["L_rA%d:" % u,
      "    v_max_f32 v%d, v%d, v%d" % (vT, vT, vM),
      "    v_sub_f32 v%d, v%d, v%d" % (vAl, vM, vT),
      "    v_mul_f32 v%d, s40, v%d" % (vAl, vAl),
      "    v_exp_f32 v%d, v%d" % (vAl, vAl),
      "    v_mov_b32 v%d, v%d" % (vM, vT),
      "    v_mul_f32 v%d, s40, v%d" % (vMC, vT),
      "    v_add_f32 v%d, 0x42700000, v%d" % (vThr, vT),
      "    s_mov_b32 s62, 1",
      "    s_branch L_bA%d" % u])
    for i in range(16):
        r.append("v_fma_f32 v%d, v%d, s40, -v%d" % (S+i, S+i, vMC))
    for i in range(16):
        r.append("v_exp_f32 v%d, v%d" % (S+i, S+i))
    return r
def softmaxB(S):
    r = []
    u = uid[0]; uid[0] += 1
    r.append("s_cmp_lg_u32 s62, 0\n    s_cbranch_scc1 L_rB%d\nL_bB%d:" % (u, u))
    t = ["L_rB%d:" % u, "    v_mul_f32 v%d, v%d, v%d" % (vL, vL, vAl)]
    for i in range(64): t.append("    v_mul_f32 v%d, v%d, v%d" % (O+i, O+i, vAl))
    t += ["    s_mov_b32 s62, 0", "    s_branch L_bB%d" % u]
    TAIL.extend(t)
    for i in range(16):
        r.append("v_add_f32 v%d, v%d, v%d" % (vL, vL, S+i))
    for i in range(8):
        r.append("v_cvt_pk_bf16_f32 v%d, v%d, v%d" % (P+i, S+2*i, S+2*i+1))
    return r
def cost(ins):
    if ins.startswith("v_exp"): return 2
    return 1
def interleave(mf, va):
    tot = sum(cost(x) for x in va); n = len(mf); vi = 0; acc = 0
    for i,(pre, m) in enumerate(mf):
        for p in pre: e(p)
        e(m)
        target = tot*(i+1)/n
        while vi < len(va) and acc + cost(va[vi]) <= target + 0.01:
            e(va[vi]); acc += cost(va[vi]); vi += 1
    while vi < len(va):
        e(va[vi]); vi += 1

def kreads(slot):
    for k in range(8):
        f = KF + k*4
        e("ds_read_b128 v[%d:%d], v%d offset:%d" % (f, f+3, KA+k, slot*8192))
def vreads():
    for k in range(4):
        e("v_add_u32 v%d, s61, v%d" % (VC+k, VA+k))
    for ks in range(2):
        for db in range(4):
            for u in range(2):
                a = VF + (db*2+ks)*4 + 2*u
                e("ds_read_b64_tr_b16 v[%d:%d], v%d offset:%d" % (a, a+1, VC+db, (ks*16+u*8)*256))
def qk_list(S, nv):
    mf = []
    for k in range(8):
        f = KF + k*4
        pre = ["s_waitcnt lgkmcnt(%d)" % min(15, nv + 7 - k)]
        if k == 0:
            m = "v_mfma_f32_32x32x16_bf16 v[%d:%d], v[%d:%d], v[%d:%d], 0" % (S, S+15, f, f+3, Q, Q+3)
        else:
            m = "v_mfma_f32_32x32x16_bf16 v[%d:%d], v[%d:%d], v[%d:%d], v[%d:%d]" % (S, S+15, f, f+3, Q+4*k, Q+4*k+3, S, S+15)
        mf.append((pre, m))
    return mf
def pv_list():
    mf = []; first = True
    for ks in range(2):
        for db in range(4):
            a = VF + (db*2+ks)*4; o = O+16*db
            pre = []
            if first: pre = ["s_waitcnt lgkmcnt(0)", "s_nop 1"]; first = False
            mf.append((pre, "v_mfma_f32_32x32x16_bf16 v[%d:%d], v[%d:%d], v[%d:%d], v[%d:%d]" % (o, o+15, a, a+3, P+4*ks, P+4*ks+3, o, o+15)))
    return mf
def issue_dyn(kslot, u):
    e("s_cmp_ge_u32 s60, 3")
    e("s_cbranch_scc1 L_noiss%d" % u)
    for kg in range(4):
        e("s_add_u32 s46, s58, %d" % (kg*8192))
        dma('K', kg*KGB + kslot*8192, "s46")
    e("s_add_u32 s59, s45, s63")
    for kg in range(4):
        e("s_add_u32 s46, s58, %d" % (kg*8192))
        dma('V', kg*KGB + 16384, "s46", "s59")
    lab("L_noiss%d" % u)
def advance():
    e("s_add_u32 s58, s58, 32768")
    e("s_mov_b32 s63, s61")
    e("s_add_u32 s61, s61, 8192")
    e("s_cmp_eq_u32 s61, 24576")
    e("s_cselect_b32 s61, 0, s61")

c("===== phase -1")
e("s_waitcnt vmcnt(%d)" % (12))
e("s_cmp_lg_u32 s36, 0")
e("s_cbranch_scc1 L_nordy")
e("s_waitcnt vmcnt(0)" if False else "s_nop 0")
lab("L_nordy")
e("s_barrier")
stamp()
for t in range(8):
    e("ds_read_b128 v[%d:%d], v%d" % (Q+4*t, Q+4*t+3, S1+t))
kreads(0)
e("s_waitcnt lgkmcnt(0)")
for (pre, m) in qk_list(S0, 0): e(m)
e("s_nop 15")
for x in softmaxA(S0): e(x)

lab("L_loop")
for par in range(2):
    c("===== phase parity %d" % par)
    Sc = S0 if par == 0 else S1
    Sn = S1 if par == 0 else S0
    if par == 1:
        e("s_cmp_eq_u32 s60, 3")
        e("s_cbranch_scc1 L_final")
    e("s_waitcnt vmcnt(4)")
    if par == 1:
        e("s_or_b32 s47, s36, s60")
        e("s_cmp_lg_u32 s47, 0")
        e("s_cbranch_scc1 L_nordy2")
        e("s_and_b32 s48, s2, 3")
        e("s_lshl_b32 s48, s48, 3")
        e("s_lshl_b32 s49, 1, s48")
        e("s_lshr_b32 s47, s2, 2")
        e("s_lshl_b32 s47, s47, 2")
        e("v_mov_b32 v%d, s49" % vX)
        e("v_mov_b32 v%d, s47" % vY)
        e("v_cmp_eq_u32 vcc, 0, v%d" % vLane)
        e("s_and_saveexec_b64 s[54:55], vcc")
        e("global_atomic_add v%d, v%d, s[12:13] sc1" % (vY, vX))
        e("s_mov_b64 exec, s[54:55]")
        lab("L_nordy2")
    e("s_barrier")
    issue_dyn(par, par)
    kreads(1-par)
    vreads()
    interleave(qk_list(Sn, 16), softmaxB(Sc))
    mf = pv_list()
    for p in mf[0][0]: e(p)
    e(mf[0][1]); e(mf[1][1])
    e("s_nop 9")
    interleave(mf[2:], softmaxA(Sn))
    advance()
e("s_add_u32 s60, s60, 1")
e("s_branch L_loop")
lab("L_final")
e("s_waitcnt vmcnt(0)")
e("s_barrier")
vreads()
for x in softmaxB(S1): e(x)
for (pre, m) in pv_list():
    for p in pre: e(p)
    e(m)
stamp()

def dump_stamps():
    if not STAMP: return
    n = nstamp[0]
    e("s_cmp_lg_u32 s36, 0")
    e("s_cbranch_scc1 L_nost%d" % n)
    e("s_waitcnt lgkmcnt(0)")
    e("s_lshl_b32 s47, s2, 8")
    e("s_add_u32 s47, s47, 0x4000000")
    for i in range(n):
        e("v_mov_b32 v%d, s%d" % (vX, 70+2*i))
        e("v_mov_b32 v%d, %d" % (vY, 4*i))
        e("buffer_store_dword v%d, v%d, s[32:35], s47 offen" % (vX, vY))
    lab("L_nost%d" % n)

if "nocomb" in A:
    stamp(); dump_stamps()
    e("s_endpgm")
c("===== merge in LDS")
e("s_xor_b32 s56, s2, 16")
e("s_nop 15")
e("v_mov_b32 v%d, v%d" % (vT2, vL))
e("s_nop 1")
e("v_permlane32_swap_b32 v%d, v%d" % (vL, vT2))
e("v_add_f32 v%d, v%d, v%d" % (vL, vL, vT2))
e("s_barrier")
stamp()
e("s_lshl_b32 s47, s36, 14")
e("v_lshlrev_b32 v%d, 4, v%d" % (vX, vLane))
e("v_add_u32 v%d, s47, v%d" % (vY, vX))
for i in range(16):
    e("ds_write_b128 v%d, v[%d:%d] offset:%d" % (vY, O+4*i, O+4*i+3, i*1024))
e("s_lshl_b32 s47, s36, 9")
e("v_lshlrev_b32 v%d, 3, v%d" % (vZ, vLane))
e("v_add_u32 v%d, s47, v%d" % (vW, vZ))
e("v_add_u32 v%d, 131072, v%d" % (vW, vW))
e("v_mov_b32 v%d, v%d" % (vT, vMC))
e("v_mov_b32 v%d, v%d" % (vT2, vL))
e("ds_write_b64 v%d, v[%d:%d]" % (vW, vT, vT2))
e("s_lshr_b32 s47, s56, 2")
e("s_lshl_b32 s47, s47, 2")
e("v_mov_b32 v15, s47")
e("global_load_dword v%d, v15, s[12:13] sc1" % (vRdy))
e("s_waitcnt lgkmcnt(0)")
e("s_barrier")
e("s_lshl_b32 s47, s51, 14")
e("s_lshl_b32 s48, s52, 12")
e("s_add_u32 s47, s47, s48")
e("v_add_u32 v%d, s47, v%d" % (vY, vX))
e("v_add_u32 v%d, 65536, v%d" % (vW, vY))
for k in range(4):
    for i in range(4):
        r = KF + (k*4+i)*4
        e("ds_read_b128 v[%d:%d], v%d offset:%d" % (r, r+3, vY if k < 2 else vW, (k%2)*32768 + i*1024))
e("s_lshl_b32 s47, s51, 9")
e("v_add_u32 v%d, s47, v%d" % (vW, vZ))
e("v_add_u32 v%d, 131072, v%d" % (vW, vW))
for k in range(4):
    e("ds_read_b64 v[%d:%d], v%d offset:%d" % (Q+2*k, Q+2*k+1, vW, k*1024))
e("s_waitcnt lgkmcnt(0)")
e("v_max3_f32 v%d, v%d, v%d, v%d" % (vT, Q, Q+2, Q+4))
e("v_max_f32 v%d, v%d, v%d" % (vMC, vT, Q+6))
for k in range(4):
    e("v_sub_f32 v%d, v%d, v%d" % (Q+8+k, Q+2*k, vMC))
for k in range(4):
    e("v_exp_f32 v%d, v%d" % (Q+8+k, Q+8+k))
e("s_nop 0")
e("v_mul_f32 v%d, v%d, v%d" % (vL, Q+1, Q+8))
for k in range(1,4):
    e("v_fmac_f32 v%d, v%d, v%d" % (vL, Q+2*k+1, Q+8+k))
for i in range(16):
    e("v_mul_f32 v%d, v%d, v%d" % (O+i, KF+i, Q+8))
    for k in range(1,4):
        e("v_fmac_f32 v%d, v%d, v%d" % (O+i, KF+16*k+i, Q+8+k))
stamp()
e("s_cmp_eq_u32 s51, s38")
e("s_cbranch_scc1 L_consumer")
e("s_and_b32 s48, s56, 3")
e("s_lshl_b32 s48, s48, 3")
e("s_add_u32 s48, s48, 0x80000")
e("s_waitcnt vmcnt(0)")
lab("L_rdy")
e("v_readfirstlane_b32 s46, v%d" % vRdy)
e("s_bfe_u32 s46, s46, s48")
e("s_cmp_ge_u32 s46, 1")
e("s_cbranch_scc1 L_rdy_ok")
e("s_sleep 4")
e("global_load_dword v%d, v15, s[12:13] sc1" % (vRdy))
e("s_waitcnt vmcnt(0)")
e("s_branch L_rdy")
lab("L_rdy_ok")
e("s_lshl_b32 s48, s56, 2")
e("s_add_u32 s48, s48, s52")
e("s_lshl_b32 s48, s48, 13")
for i in range(4):
    e("buffer_store_dwordx4 v[%d:%d], v%d, s[32:35], s48 offen offset:%d sc0 sc1" % (O+4*i, O+4*i+3, vX, i*1024))
e("s_add_u32 s48, s48, 4096")
e("v_mov_b32 v%d, v%d" % (vT, vMC))
e("v_mov_b32 v%d, v%d" % (vT2, vL))
e("buffer_store_dwordx2 v[%d:%d], v%d, s[32:35], s48 offen sc0 sc1" % (vT, vT2, vZ))
e("s_waitcnt vmcnt(0)")
e("s_lshl_b32 s48, s56, 7")
e("s_lshl_b32 s47, s52, 2")
e("s_add_u32 s48, s48, s47")
e("s_add_u32 s48, s48, %d" % FLAGS)
e("v_mov_b32 v%d, 1" % vT)
e("v_mov_b32 v%d, 0" % vT2)
e("v_cmp_eq_u32 vcc, 0, v%d" % vLane)
e("s_and_saveexec_b64 s[54:55], vcc")
e("buffer_store_dword v%d, v%d, s[32:35], s48 offen sc0 sc1" % (vT, vT2))
e("s_branch L_end")
lab("L_consumer")
e("s_lshl_b32 s48, s2, 7")
e("s_lshl_b32 s47, s52, 2")
e("s_add_u32 s48, s48, s47")
e("s_add_u32 s48, s48, %d" % FLAGS)
e("v_mov_b32 v%d, 0" % vT2)
lab("L_poll")
e("buffer_load_dword v%d, v%d, s[32:35], s48 offen sc0 sc1" % (vW, vT2))
e("s_waitcnt vmcnt(0)")
e("v_readfirstlane_b32 s46, v%d" % vW)
e("s_cmp_eq_u32 s46, 1")
e("s_cbranch_scc1 L_go")
e("s_branch L_poll")
lab("L_go")
stamp()
e("s_lshl_b32 s48, s2, 2")
e("s_add_u32 s48, s48, s52")
e("s_lshl_b32 s48, s48, 13")
for i in range(4):
    e("buffer_load_dwordx4 v[%d:%d], v%d, s[32:35], s48 offen offset:%d sc0 sc1" % (KF+4*i, KF+4*i+3, vX, i*1024))
e("s_add_u32 s48, s48, 4096")
e("buffer_load_dwordx2 v[%d:%d], v%d, s[32:35], s48 offen sc0 sc1" % (Q, Q+1, vZ))
e("s_waitcnt vmcnt(0)")
e("v_max_f32 v%d, v%d, v%d" % (vT, vMC, Q))
e("v_sub_f32 v%d, v%d, v%d" % (Q+2, vMC, vT))
e("v_sub_f32 v%d, v%d, v%d" % (Q+3, Q, vT))
e("v_exp_f32 v%d, v%d" % (Q+2, Q+2))
e("v_exp_f32 v%d, v%d" % (Q+3, Q+3))
e("s_nop 0")
e("v_mul_f32 v%d, v%d, v%d" % (vL, vL, Q+2))
e("v_fmac_f32 v%d, v%d, v%d" % (vL, Q+1, Q+3))
e("v_rcp_f32 v%d, v%d" % (vL, vL))
e("s_nop 0")
e("v_mul_f32 v%d, v%d, v%d" % (Q+2, Q+2, vL))
e("v_mul_f32 v%d, v%d, v%d" % (Q+3, Q+3, vL))
for i in range(16):
    e("v_mul_f32 v%d, v%d, v%d" % (O+i, O+i, Q+2))
    e("v_fmac_f32 v%d, v%d, v%d" % (O+i, KF+i, Q+3))
e("v_and_b32 v%d, 31, v%d" % (vX, vLane))
e("v_lshrrev_b32 v%d, 5, v%d" % (vY, vLane))
e("v_lshlrev_b32 v%d, 8, v%d" % (vX, vX))
e("v_lshl_add_u32 v%d, v%d, 3, v%d" % (vX, vY, vX))
e("s_lshl_b32 s47, s52, 6")
e("s_add_u32 s47, s47, s43")
for i in range(4):
    e("v_cvt_pk_bf16_f32 v%d, v%d, v%d" % (Q+8+2*i, O+4*i, O+4*i+1))
    e("v_cvt_pk_bf16_f32 v%d, v%d, v%d" % (Q+8+2*i+1, O+4*i+2, O+4*i+3))
for i in range(4):
    e("buffer_store_dwordx2 v[%d:%d], v%d, s[28:31], s47 offen offset:%d" % (Q+8+2*i, Q+8+2*i+1, vX, i*16))
stamp()
dump_stamps()
lab("L_end")
e("s_endpgm")
L.extend(TAIL)

ftr = """
.section .rodata,"a"
.p2align 6
.amdhsa_kernel standalone__gqa_softmax__sampling_kernel
  .amdhsa_next_free_vgpr %d
  .amdhsa_next_free_sgpr 102
  .amdhsa_accum_offset %d
  .amdhsa_group_segment_fixed_size 0
  .amdhsa_kernarg_size 48
  .amdhsa_user_sgpr_count 2
  .amdhsa_user_sgpr_kernarg_segment_ptr 1
  .amdhsa_system_sgpr_workgroup_id_x 1
.end_amdhsa_kernel
""" % (NVGPR, NVGPR)
open("standalone__gqa_softmax__sampling.s", "w").write(hdr + "\n".join(L) + "\n" + ftr)
```

```python
import sys, re
A = sys.argv[1:]
L = []
TAIL = []
def e(s): L.append("    " + s)
def lab(s): L.append(s + ":")
def c(s): L.append("    ; " + s)

NTFLAG = " nt"
STAMP = "stamp" in A
KGB = 40960

Q=16; S0=48; S1=64; P=80; O=88; KF=152; VF=184; KA=216; VA=224; VC=228
vM=1; vL=2; vAl=3; vT=4; vT2=5; vMC=6; vKoff=7; vVoff=8; vLane=9; vX=10; vY=11; vZ=12; vW=13; vRdy=14; vThr=232
NVGPR = 236
FLAGS = 0x1000000

hdr = """; Kernarg layout for this problem (48 bytes, ptrs only, base s[0:1]):
; @launch grid=(256,1,1) block=(512,1,1) lds=163840
.amdgcn_target "amdgcn-amd-amdhsa--gfx950"
.text
.globl standalone__gqa_softmax__sampling_kernel
.p2align 8
.type standalone__gqa_softmax__sampling_kernel,@function
standalone__gqa_softmax__sampling_kernel:
"""
nstamp = [0]
def stamp():
    if not STAMP: return
    e("s_memrealtime s[%d:%d]" % (70+2*nstamp[0], 71+2*nstamp[0]))
    nstamp[0] += 1

e("s_cmp_ge_u32 s2, 256")
e("s_cbranch_scc1 L_end")
e("s_load_dwordx4 s[4:7], s[0:1], 0")
e("s_load_dwordx4 s[8:11], s[0:1], 16")
e("s_load_dwordx4 s[12:15], s[0:1], 32")
stamp()
e("v_and_b32 v%d, 63, v0" % vLane)
e("v_lshrrev_b32 v%d, 6, v0" % vX)
e("s_nop 0")
e("v_readfirstlane_b32 s36, v%d" % vX)
e("s_and_b32 s37, s2, 7")
e("s_lshr_b32 s41, s2, 5")
e("s_lshl_b32 s41, s41, 3")
e("s_or_b32 s37, s37, s41")
e("s_bfe_u32 s50, s2, 0x10003")
e("s_bfe_u32 s38, s2, 0x10004")
e("s_and_b32 s51, s36, 1")
e("s_lshr_b32 s52, s36, 1")
e("s_lshl_b32 s39, s37, 19")
e("s_lshl_b32 s41, s38, 18")
e("s_add_u32 s39, s39, s41")
e("s_mov_b32 s40, 0x3e0293ee")
if "rot" in A:
    e("s_lshr_b32 s65, s37, 3")
    e("s_add_u32 s65, s65, s37")
    e("s_lshl_b32 s41, s38, 2")
    e("s_add_u32 s65, s65, s41")
    e("s_and_b32 s65, s65, 7")
else:
    e("s_mov_b32 s65, 0")
e("v_lshrrev_b32 v%d, 4, v%d" % (vX, vLane))
e("v_and_b32 v%d, 15, v%d" % (vY, vLane))
e("s_lshl_b32 s44, s36, 2")
e("v_add_u32 v%d, s44, v%d" % (vZ, vX))
e("v_and_b32 v%d, 15, v%d" % (vT, vZ))
e("v_xor_b32 v%d, v%d, v%d" % (vW, vY, vT))
e("v_lshlrev_b32 v%d, 4, v%d" % (vW, vW))
e("v_lshl_add_u32 v%d, v%d, 8, v%d" % (vKoff, vZ, vW))
e("v_lshlrev_b32 v%d, 2, v%d" % (vW, vX))
e("v_xor_b32 v%d, v%d, v%d" % (vW, vY, vW))
e("v_lshlrev_b32 v%d, 4, v%d" % (vW, vW))
e("v_lshl_add_u32 v%d, v%d, 8, v%d" % (vVoff, vZ, vW))
e("s_lshl_b32 s45, s36, 10")
e("s_lshl_b32 s42, s37, 2")
e("s_lshl_b32 s41, s50, 1")
e("s_add_u32 s42, s42, s41")
e("s_lshl_b32 s57, s42, 13")
e("s_add_u32 s42, s42, s51")
e("s_lshl_b32 s43, s42, 13")
e("s_waitcnt lgkmcnt(0)")
for (base, p, n) in ((24,4,2097152),(16,6,33554432),(20,8,33554432),(28,10,2097152),(32,14,268435456)):
    e("s_mov_b32 s%d, s%d" % (base, p))
    e("s_and_b32 s%d, s%d, 0xffff" % (base+1, p+1))
    e("s_mov_b32 s%d, %d" % (base+2, n))
    e("s_mov_b32 s%d, 0x00020000" % (base+3))

def dma(kind, ldsoff_imm, soff_sgpr, ldsoff_sgpr=None):
    if ldsoff_sgpr is None:
        e("s_add_u32 m0, s45, %d" % ldsoff_imm)
    else:
        e("s_add_u32 m0, %s, %d" % (ldsoff_sgpr, ldsoff_imm))
    e("s_nop 0")
    if "nodma" in A: return
    srd = {'K':16,'V':20,'Q':24}[kind]
    e("buffer_load_dwordx4 v%d, s[%d:%d], %s offen%s lds" % (vVoff if kind=='V' else vKoff, srd, srd+3, soff_sgpr, NTFLAG))

dma('Q', 32768, "s57")
e("s_add_u32 s46, s57, 8192")
dma('Q', KGB + 32768, "s46")
def issue_static(kind, s):
    e("s_add_u32 s41, s65, %d" % s)
    e("s_and_b32 s41, s41, 7")
    e("s_lshl_b32 s41, s41, 15")
    e("s_add_u32 s41, s41, s39")
    for kg in range(4):
        off = kg*KGB + ((s%2)*8192 if kind == 'K' else 16384 + (s%3)*8192)
        e("s_add_u32 s46, s41, %d" % (kg*8192))
        dma(kind, off, "s46")
issue_static('K', 0); issue_static('K', 1); issue_static('V', 0); issue_static('V', 1)

e("s_cmp_lg_u32 s36, 0")
e("s_cbranch_scc1 L_noclr")
for i in range(4): e("v_mov_b32 v%d, 0" % (S0+i))
e("v_mov_b32 v%d, 0" % vX)
e("s_lshl_b32 s47, s2, 7")
e("s_add_u32 s47, s47, %d" % FLAGS)
e("v_cmp_eq_u32 vcc, 0, v%d" % vLane)
e("s_and_saveexec_b64 s[54:55], vcc")
e("buffer_store_dwordx4 v[%d:%d], v%d, s[32:35], s47 offen sc0 sc1" % (S0, S0+3, vX))
e("s_mov_b64 exec, s[54:55]")
lab("L_noclr")

e("s_mul_i32 s47, s52, %d" % KGB)
e("v_and_b32 v%d, 31, v%d" % (vX, vLane))
e("v_lshrrev_b32 v%d, 5, v%d" % (vY, vLane))
e("v_and_b32 v%d, 15, v%d" % (vZ, vLane))
for t in range(8):
    e("v_or_b32 v%d, %d, v%d" % (vW, 2*t, vY))
    e("v_xor_b32 v%d, v%d, v%d" % (vW, vW, vZ))
    e("v_lshlrev_b32 v%d, 4, v%d" % (vW, vW))
    e("v_lshl_add_u32 v%d, v%d, 8, v%d" % (KA+t, vX, vW))
e("s_mul_i32 s48, s51, %d" % KGB)
e("s_add_u32 s48, s48, 32768")
for t in range(8):
    e("v_add_u32 v%d, s48, v%d" % (S1+t, KA+t))
    e("v_add_u32 v%d, s47, v%d" % (KA+t, KA+t))
e("v_lshrrev_b32 v%d, 5, v%d" % (vX, vLane))
e("v_bfe_u32 v%d, v%d, 2, 2" % (vY, vLane))
e("v_lshl_add_u32 v%d, v%d, 2, v%d" % (vZ, vX, vY))
e("v_lshlrev_b32 v%d, 8, v%d" % (vZ, vZ))
e("v_bfe_u32 v%d, v%d, 4, 1" % (vX, vLane))
e("v_lshl_add_u32 v%d, v%d, 5, v%d" % (vZ, vX, vZ))
e("v_and_b32 v%d, 3, v%d" % (vX, vLane))
e("v_lshl_add_u32 v%d, v%d, 3, v%d" % (vZ, vX, vZ))
e("v_add_u32 v%d, s47, v%d" % (vZ, vZ))
e("v_add_u32 v%d, 16384, v%d" % (vZ, vZ))
for db in range(4):
    e("v_xor_b32 v%d, %d, v%d" % (vW, db, vY))
    e("v_lshl_add_u32 v%d, v%d, 6, v%d" % (VA+db, vW, vZ))
for i in range(64): e("v_mov_b32 v%d, 0" % (O+i))
e("v_mov_b32 v%d, 0" % vL)
e("v_mov_b32 v%d, 0xff800000" % vM)
e("v_mov_b32 v%d, 0xff800000" % vThr)
e("s_mov_b32 s60, 0")
e("s_mov_b32 s61, 0")
e("s_mov_b32 s62, 0")
e("s_mov_b32 s63, 16384")
e("s_add_u32 s68, s65, 2")

uid = [0]
def softmaxA(S):
    r = []
    r.append("v_max3_f32 v%d, v%d, v%d, v%d" % (vT, S, S+1, S+2))
    for i in range(3, 15, 2):
        r.append("v_max3_f32 v%d, v%d, v%d, v%d" % (vT, vT, S+i, S+i+1))
    r.append("v_max_f32 v%d, v%d, v%d" % (vT, vT, S+15))
    r.append("v_mov_b32 v%d, v%d" % (vT2, vT))
    r.append("s_nop 1")
    r.append("v_permlane32_swap_b32 v%d, v%d" % (vT, vT2))
    r.append("v_max_f32 v%d, v%d, v%d" % (vT, vT, vT2))
    u = uid[0]; uid[0] += 1
    r.append("s_nop 0\n    v_cmp_gt_f32 vcc, v%d, v%d\n    s_nop 1\n    s_cbranch_vccnz L_rA%d\nL_bA%d:" % (vT, vThr, u, u))
    TAIL.extend(["L_rA%d:" % u,
      "    v_max_f32 v%d, v%d, v%d" % (vT, vT, vM),
      "    v_sub_f32 v%d, v%d, v%d" % (vAl, vM, vT),
      "    v_mul_f32 v%d, s40, v%d" % (vAl, vAl),
      "    v_exp_f32 v%d, v%d" % (vAl, vAl),
      "    v_mov_b32 v%d, v%d" % (vM, vT),
      "    v_mul_f32 v%d, s40, v%d" % (vMC, vT),
      "    v_add_f32 v%d, 0x42700000, v%d" % (vThr, vT),
      "    s_mov_b32 s62, 1",
      "    s_branch L_bA%d" % u])
    for i in range(16):
        r.append("v_fma_f32 v%d, v%d, s40, -v%d" % (S+i, S+i, vMC))
    for i in range(16):
        r.append("v_exp_f32 v%d, v%d" % (S+i, S+i))
    return r
def softmaxB(S):
    r = []
    u = uid[0]; uid[0] += 1
    r.append("s_cmp_lg_u32 s62, 0\n    s_cbranch_scc1 L_rB%d\nL_bB%d:" % (u, u))
    t = ["L_rB%d:" % u, "    v_mul_f32 v%d, v%d, v%d" % (vL, vL, vAl)]
    for i in range(64): t.append("    v_mul_f32 v%d, v%d, v%d" % (O+i, O+i, vAl))
    t += ["    s_mov_b32 s62, 0", "    s_branch L_bB%d" % u]
    TAIL.extend(t)
    for i in range(16):
        r.append("v_add_f32 v%d, v%d, v%d" % (vL, vL, S+i))
    for i in range(8):
        r.append("v_cvt_pk_bf16_f32 v%d, v%d, v%d" % (P+i, S+2*i, S+2*i+1))
    return r
def cost(ins):
    if ins.startswith("v_exp"): return 2
    return 1
def interleave(mf, va):
    tot = sum(cost(x) for x in va); n = len(mf); vi = 0; acc = 0
    for i,(pre, m) in enumerate(mf):
        for p in pre: e(p)
        e(m)
        target = tot*(i+1)/n
        while vi < len(va) and acc + cost(va[vi]) <= target + 0.01:
            e(va[vi]); acc += cost(va[vi]); vi += 1
    while vi < len(va):
        e(va[vi]); vi += 1

def kreads(slot):
    for k in range(8):
        f = KF + k*4
        e("ds_read_b128 v[%d:%d], v%d offset:%d" % (f, f+3, KA+k, slot*8192))
def vreads():
    for k in range(4):
        e("v_add_u32 v%d, s61, v%d" % (VC+k, VA+k))
    for ks in range(2):
        for db in range(4):
            for u in range(2):
                a = VF + (db*2+ks)*4 + 2*u
                e("ds_read_b64_tr_b16 v[%d:%d], v%d offset:%d" % (a, a+1, VC+db, (ks*16+u*8)*256))
def qk_list(S, nv):
    mf = []
    for k in range(8):
        f = KF + k*4
        pre = ["s_waitcnt lgkmcnt(%d)" % min(15, nv + 7 - k)]
        if k == 0:
            m = "v_mfma_f32_32x32x16_bf16 v[%d:%d], v[%d:%d], v[%d:%d], 0" % (S, S+15, f, f+3, Q, Q+3)
        else:
            m = "v_mfma_f32_32x32x16_bf16 v[%d:%d], v[%d:%d], v[%d:%d], v[%d:%d]" % (S, S+15, f, f+3, Q+4*k, Q+4*k+3, S, S+15)
        mf.append((pre, m))
    return mf
def pv_list():
    mf = []; first = True
    for ks in range(2):
        for db in range(4):
            a = VF + (db*2+ks)*4; o = O+16*db
            pre = []
            if first: pre = ["s_waitcnt lgkmcnt(0)", "s_nop 1"]; first = False
            mf.append((pre, "v_mfma_f32_32x32x16_bf16 v[%d:%d], v[%d:%d], v[%d:%d], v[%d:%d]" % (o, o+15, a, a+3, P+4*ks, P+4*ks+3, o, o+15)))
    return mf
def issue_dyn(kslot, u):
    e("s_cmp_ge_u32 s60, 3")
    e("s_cbranch_scc1 L_noiss%d" % u)
    e("s_and_b32 s58, s68, 7")
    e("s_lshl_b32 s58, s58, 15")
    e("s_add_u32 s58, s58, s39")
    for kg in range(4):
        e("s_add_u32 s46, s58, %d" % (kg*8192))
        dma('K', kg*KGB + kslot*8192, "s46")
    e("s_add_u32 s59, s45, s63")
    for kg in range(4):
        e("s_add_u32 s46, s58, %d" % (kg*8192))
        dma('V', kg*KGB + 16384, "s46", "s59")
    lab("L_noiss%d" % u)
def advance():
    e("s_add_u32 s68, s68, 1")
    e("s_mov_b32 s63, s61")
    e("s_add_u32 s61, s61, 8192")
    e("s_cmp_eq_u32 s61, 24576")
    e("s_cselect_b32 s61, 0, s61")

c("===== phase -1")
e("s_waitcnt vmcnt(%d)" % (12))
e("s_cmp_lg_u32 s36, 0")
e("s_cbranch_scc1 L_nordy")
e("s_waitcnt vmcnt(0)" if False else "s_nop 0")
lab("L_nordy")
e("s_barrier")
stamp()
for t in range(8):
    e("ds_read_b128 v[%d:%d], v%d" % (Q+4*t, Q+4*t+3, S1+t))
kreads(0)
e("s_waitcnt lgkmcnt(0)")
for (pre, m) in qk_list(S0, 0): e(m)
e("s_nop 15")
for x in softmaxA(S0): e(x)

lab("L_loop")
for par in range(2):
    c("===== phase parity %d" % par)
    Sc = S0 if par == 0 else S1
    Sn = S1 if par == 0 else S0
    if par == 1:
        e("s_cmp_eq_u32 s60, 3")
        e("s_cbranch_scc1 L_final")
    e("s_waitcnt vmcnt(4)")
    if par == 1:
        e("s_or_b32 s47, s36, s60")
        e("s_cmp_lg_u32 s47, 0")
        e("s_cbranch_scc1 L_nordy2")
        e("s_and_b32 s48, s2, 3")
        e("s_lshl_b32 s48, s48, 3")
        e("s_lshl_b32 s49, 1, s48")
        e("s_lshr_b32 s47, s2, 2")
        e("s_lshl_b32 s47, s47, 2")
        e("v_mov_b32 v%d, s49" % vX)
        e("v_mov_b32 v%d, s47" % vY)
        e("v_cmp_eq_u32 vcc, 0, v%d" % vLane)
        e("s_and_saveexec_b64 s[54:55], vcc")
        e("global_atomic_add v%d, v%d, s[12:13] sc1" % (vY, vX))
        e("s_mov_b64 exec, s[54:55]")
        lab("L_nordy2")
    e("s_barrier")
    issue_dyn(par, par)
    if "nocompute" in A:
        advance(); continue
    kreads(1-par)
    vreads()
    interleave(qk_list(Sn, 16), softmaxB(Sc))
    mf = pv_list()
    for p in mf[0][0]: e(p)
    e(mf[0][1]); e(mf[1][1])
    e("s_nop 9")
    interleave(mf[2:], softmaxA(Sn))
    advance()
e("s_add_u32 s60, s60, 1")
e("s_branch L_loop")
lab("L_final")
e("s_waitcnt vmcnt(0)")
e("s_barrier")
vreads()
for x in softmaxB(S1): e(x)
for (pre, m) in pv_list():
    for p in pre: e(p)
    e(m)
stamp()

def dump_stamps():
    if not STAMP: return
    n = nstamp[0]
    e("s_cmp_lg_u32 s36, 0")
    e("s_cbranch_scc1 L_nost%d" % n)
    e("s_waitcnt lgkmcnt(0)")
    e("s_lshl_b32 s47, s2, 8")
    e("s_add_u32 s47, s47, 0x4000000")
    for i in range(n):
        e("v_mov_b32 v%d, s%d" % (vX, 70+2*i))
        e("v_mov_b32 v%d, %d" % (vY, 4*i))
        e("buffer_store_dword v%d, v%d, s[32:35], s47 offen" % (vX, vY))
    lab("L_nost%d" % n)

if "nocomb" in A:
    stamp(); dump_stamps()
    e("s_endpgm")
c("===== merge in LDS")
e("s_xor_b32 s56, s2, 16")
e("s_lshr_b32 s47, s56, 2")
e("s_lshl_b32 s47, s47, 2")
e("v_mov_b32 v15, s47")
e("global_load_dword v%d, v15, s[12:13] sc1" % (vRdy))
e("v_mov_b32 v%d, v%d" % (vT2, vL))
e("v_lshlrev_b32 v%d, 4, v%d" % (vX, vLane))
e("s_nop 0")
e("v_permlane32_swap_b32 v%d, v%d" % (vL, vT2))
e("v_add_f32 v%d, v%d, v%d" % (vL, vL, vT2))
e("s_mul_i32 s47, s52, %d" % KGB)
e("s_mul_i32 s48, s51, 12288")
e("s_add_u32 s48, s48, s47")
e("v_add_u32 v%d, s48, v%d" % (vY, vX))
e("s_lshl_b32 s49, s51, 9")
e("s_add_u32 s49, s49, s47")
e("s_add_u32 s49, s49, 32768")
e("v_lshlrev_b32 v%d, 3, v%d" % (vZ, vLane))
e("v_add_u32 v%d, s49, v%d" % (vW, vZ))
e("v_mov_b32 v%d, v%d" % (vT, vMC))
e("v_mov_b32 v%d, v%d" % (vT2, vL))
e("ds_write_b64 v%d, v[%d:%d]" % (vW, vT, vT2))
for kg in range(4):
    if kg < 3:
        e("s_cmp_lg_u32 s52, %d" % kg)
        e("s_cbranch_scc1 L_mw%d" % (kg+1))
    j = 0
    for db in range(4):
        if db == kg: continue
        for i in range(4):
            e("ds_write_b128 v%d, v[%d:%d] offset:%d" % (vY, O+16*db+4*i, O+16*db+4*i+3, j*4096+i*1024))
        j += 1
    for i in range(16):
        e("v_mov_b32 v%d, v%d" % (S0+i, O+16*kg+i))
    if kg < 3:
        e("s_branch L_mwdone")
        lab("L_mw%d" % (kg+1))
lab("L_mwdone")
e("s_waitcnt lgkmcnt(0)")
e("s_barrier")
stamp()
for t in range(1, 4):
    e("s_add_u32 s47, s52, %d" % t)
    e("s_and_b32 s47, s47, 3")
    e("s_mul_i32 s48, s47, %d" % KGB)
    e("s_cmp_lt_u32 s52, s47")
    e("s_cselect_b32 s49, 0, 1")
    e("s_sub_u32 s49, s52, s49")
    e("s_lshl_b32 s49, s49, 12")
    e("s_add_u32 s49, s49, s48")
    e("s_mul_i32 s46, s51, 12288")
    e("s_add_u32 s49, s49, s46")
    e("v_add_u32 v%d, s49, v%d" % (vY, vX))
    for i in range(4):
        r = KF + ((t-1)*4+i)*4
        e("ds_read_b128 v[%d:%d], v%d offset:%d" % (r, r+3, vY, i*1024))
    e("s_lshl_b32 s49, s51, 9")
    e("s_add_u32 s49, s49, s48")
    e("s_add_u32 s49, s49, 32768")
    e("v_add_u32 v%d, s49, v%d" % (vW, vZ))
    e("ds_read_b64 v[%d:%d], v%d" % (Q+2*t, Q+2*t+1, vW))
e("v_mov_b32 v%d, v%d" % (Q, vMC))
e("v_mov_b32 v%d, v%d" % (Q+1, vL))
e("s_waitcnt lgkmcnt(0)")
e("v_max3_f32 v%d, v%d, v%d, v%d" % (vT, Q, Q+2, Q+4))
e("v_max_f32 v%d, v%d, v%d" % (vMC, vT, Q+6))
for k in range(4):
    e("v_sub_f32 v%d, v%d, v%d" % (Q+8+k, Q+2*k, vMC))
for k in range(4):
    e("v_exp_f32 v%d, v%d" % (Q+8+k, Q+8+k))
e("s_nop 0")
e("v_mul_f32 v%d, v%d, v%d" % (vL, Q+1, Q+8))
for k in range(1,4):
    e("v_fmac_f32 v%d, v%d, v%d" % (vL, Q+2*k+1, Q+8+k))
for i in range(16):
    e("v_mul_f32 v%d, v%d, v%d" % (O+i, S0+i, Q+8))
    for k in range(1,4):
        e("v_fmac_f32 v%d, v%d, v%d" % (O+i, KF+16*(k-1)+i, Q+8+k))
stamp()
e("s_cmp_eq_u32 s51, s38")
e("s_cbranch_scc1 L_consumer")
e("s_and_b32 s48, s56, 3")
e("s_lshl_b32 s48, s48, 3")
e("s_add_u32 s48, s48, 0x80000")
e("s_waitcnt vmcnt(0)")
lab("L_rdy")
e("v_readfirstlane_b32 s46, v%d" % vRdy)
e("s_bfe_u32 s46, s46, s48")
e("s_cmp_ge_u32 s46, 1")
e("s_cbranch_scc1 L_rdy_ok")
e("s_sleep 4")
e("global_load_dword v%d, v15, s[12:13] sc1" % (vRdy))
e("s_waitcnt vmcnt(0)")
e("s_branch L_rdy")
lab("L_rdy_ok")
e("s_lshl_b32 s48, s56, 2")
e("s_add_u32 s48, s48, s52")
e("s_lshl_b32 s48, s48, 13")
for i in range(4):
    e("buffer_store_dwordx4 v[%d:%d], v%d, s[32:35], s48 offen offset:%d sc0 sc1" % (O+4*i, O+4*i+3, vX, i*1024))
e("s_add_u32 s48, s48, 4096")
e("v_mov_b32 v%d, v%d" % (vT, vMC))
e("v_mov_b32 v%d, v%d" % (vT2, vL))
e("buffer_store_dwordx2 v[%d:%d], v%d, s[32:35], s48 offen sc0 sc1" % (vT, vT2, vZ))
e("s_waitcnt vmcnt(0)")
e("s_lshl_b32 s48, s56, 7")
e("s_lshl_b32 s47, s52, 2")
e("s_add_u32 s48, s48, s47")
e("s_add_u32 s48, s48, %d" % FLAGS)
e("v_mov_b32 v%d, 1" % vT)
e("v_mov_b32 v%d, 0" % vT2)
e("v_cmp_eq_u32 vcc, 0, v%d" % vLane)
e("s_and_saveexec_b64 s[54:55], vcc")
e("buffer_store_dword v%d, v%d, s[32:35], s48 offen sc0 sc1" % (vT, vT2))
e("s_branch L_end")
lab("L_consumer")
e("s_lshl_b32 s48, s2, 7")
e("s_lshl_b32 s47, s52, 2")
e("s_add_u32 s48, s48, s47")
e("s_add_u32 s48, s48, %d" % FLAGS)
e("v_mov_b32 v%d, 0" % vT2)
lab("L_poll")
e("buffer_load_dword v%d, v%d, s[32:35], s48 offen sc0 sc1" % (vW, vT2))
e("s_waitcnt vmcnt(0)")
e("v_readfirstlane_b32 s46, v%d" % vW)
e("s_cmp_eq_u32 s46, 1")
e("s_cbranch_scc1 L_go")
e("s_branch L_poll")
lab("L_go")
stamp()
e("s_lshl_b32 s48, s2, 2")
e("s_add_u32 s48, s48, s52")
e("s_lshl_b32 s48, s48, 13")
for i in range(4):
    e("buffer_load_dwordx4 v[%d:%d], v%d, s[32:35], s48 offen offset:%d sc0 sc1" % (KF+4*i, KF+4*i+3, vX, i*1024))
e("s_add_u32 s48, s48, 4096")
e("buffer_load_dwordx2 v[%d:%d], v%d, s[32:35], s48 offen sc0 sc1" % (Q, Q+1, vZ))
e("s_waitcnt vmcnt(0)")
e("v_max_f32 v%d, v%d, v%d" % (vT, vMC, Q))
e("v_sub_f32 v%d, v%d, v%d" % (Q+2, vMC, vT))
e("v_sub_f32 v%d, v%d, v%d" % (Q+3, Q, vT))
e("v_exp_f32 v%d, v%d" % (Q+2, Q+2))
e("v_exp_f32 v%d, v%d" % (Q+3, Q+3))
e("s_nop 0")
e("v_mul_f32 v%d, v%d, v%d" % (vL, vL, Q+2))
e("v_fmac_f32 v%d, v%d, v%d" % (vL, Q+1, Q+3))
e("v_rcp_f32 v%d, v%d" % (vL, vL))
e("s_nop 0")
e("v_mul_f32 v%d, v%d, v%d" % (Q+2, Q+2, vL))
e("v_mul_f32 v%d, v%d, v%d" % (Q+3, Q+3, vL))
for i in range(16):
    e("v_mul_f32 v%d, v%d, v%d" % (O+i, O+i, Q+2))
    e("v_fmac_f32 v%d, v%d, v%d" % (O+i, KF+i, Q+3))
e("v_and_b32 v%d, 31, v%d" % (vX, vLane))
e("v_lshrrev_b32 v%d, 5, v%d" % (vY, vLane))
e("v_lshlrev_b32 v%d, 8, v%d" % (vX, vX))
e("v_lshl_add_u32 v%d, v%d, 3, v%d" % (vX, vY, vX))
e("s_lshl_b32 s47, s52, 6")
e("s_add_u32 s47, s47, s43")
for i in range(4):
    e("v_cvt_pk_bf16_f32 v%d, v%d, v%d" % (Q+8+2*i, O+4*i, O+4*i+1))
    e("v_cvt_pk_bf16_f32 v%d, v%d, v%d" % (Q+8+2*i+1, O+4*i+2, O+4*i+3))
for i in range(4):
    e("buffer_store_dwordx2 v[%d:%d], v%d, s[28:31], s47 offen offset:%d" % (Q+8+2*i, Q+8+2*i+1, vX, i*16))
stamp()
dump_stamps()
lab("L_end")
e("s_endpgm")
L.extend(TAIL)

ftr = """
.section .rodata,"a"
.p2align 6
.amdhsa_kernel standalone__gqa_softmax__sampling_kernel
  .amdhsa_next_free_vgpr %d
  .amdhsa_next_free_sgpr 102
  .amdhsa_accum_offset %d
  .amdhsa_group_segment_fixed_size 0
  .amdhsa_kernarg_size 48
  .amdhsa_user_sgpr_count 2
  .amdhsa_user_sgpr_kernarg_segment_ptr 1
  .amdhsa_system_sgpr_workgroup_id_x 1
.end_amdhsa_kernel
""" % (NVGPR, NVGPR)
open("standalone__gqa_softmax__sampling.s", "w").write(hdr + "\n".join(L) + "\n" + ftr)
```

```python
import sys, re
A = sys.argv[1:]
L = []
TAIL = []
def e(s): L.append("    " + s)
def lab(s): L.append(s + ":")
def c(s): L.append("    ; " + s)

NTFLAG = " nt"
STAMP = "stamp" in A
KGB = 40960

Q=16; S0=48; S1=64; P=80; O=88; KF=152; VF=184; KA=216; VA=224; VC=228
vM=1; vL=2; vAl=3; vT=4; vT2=5; vMC=6; vKoff=7; vVoff=8; vLane=9; vX=10; vY=11; vZ=12; vW=13; vRdy=14; vThr=232
NVGPR = 236
FLAGS = 0x1000000

hdr = """; Kernarg layout for this problem (48 bytes, ptrs only, base s[0:1]):
; @launch grid=(256,1,1) block=(512,1,1) lds=163840
.amdgcn_target "amdgcn-amd-amdhsa--gfx950"
.text
.globl standalone__gqa_softmax__sampling_kernel
.p2align 8
.type standalone__gqa_softmax__sampling_kernel,@function
standalone__gqa_softmax__sampling_kernel:
"""
nstamp = [0]
def stamp():
    if not STAMP: return
    e("s_memrealtime s[%d:%d]" % (70+2*nstamp[0], 71+2*nstamp[0]))
    nstamp[0] += 1

e("s_cmp_ge_u32 s2, 256")
e("s_cbranch_scc1 L_end")
e("s_load_dwordx4 s[4:7], s[0:1], 0")
e("s_load_dwordx4 s[8:11], s[0:1], 16")
e("s_load_dwordx4 s[12:15], s[0:1], 32")
e("s_memrealtime s[90:91]")
stamp()
e("v_and_b32 v%d, 63, v0" % vLane)
e("v_lshrrev_b32 v%d, 6, v0" % vX)
e("s_nop 0")
e("v_readfirstlane_b32 s36, v%d" % vX)
e("s_and_b32 s37, s2, 7")
e("s_lshr_b32 s41, s2, 5")
e("s_lshl_b32 s41, s41, 3")
e("s_or_b32 s37, s37, s41")
e("s_bfe_u32 s50, s2, 0x10003")
e("s_bfe_u32 s38, s2, 0x10004")
e("s_and_b32 s51, s36, 1")
e("s_lshr_b32 s52, s36, 1")
e("s_lshl_b32 s39, s37, 19")
e("s_lshl_b32 s41, s38, 18")
e("s_add_u32 s39, s39, s41")
e("s_mov_b32 s40, 0x3e0293ee")
if "rot" in A:
    e("s_lshr_b32 s65, s37, 3")
    e("s_add_u32 s65, s65, s37")
    e("s_lshl_b32 s41, s38, 2")
    e("s_add_u32 s65, s65, s41")
    e("s_and_b32 s65, s65, 7")
else:
    e("s_mov_b32 s65, 0")
e("v_lshrrev_b32 v%d, 4, v%d" % (vX, vLane))
e("v_and_b32 v%d, 15, v%d" % (vY, vLane))
e("s_lshl_b32 s44, s36, 2")
e("v_add_u32 v%d, s44, v%d" % (vZ, vX))
e("v_and_b32 v%d, 15, v%d" % (vT, vZ))
e("v_xor_b32 v%d, v%d, v%d" % (vW, vY, vT))
e("v_lshlrev_b32 v%d, 4, v%d" % (vW, vW))
e("v_lshl_add_u32 v%d, v%d, 8, v%d" % (vKoff, vZ, vW))
e("v_lshlrev_b32 v%d, 2, v%d" % (vW, vX))
e("v_xor_b32 v%d, v%d, v%d" % (vW, vY, vW))
e("v_lshlrev_b32 v%d, 4, v%d" % (vW, vW))
e("v_lshl_add_u32 v%d, v%d, 8, v%d" % (vVoff, vZ, vW))
e("s_lshl_b32 s45, s36, 10")
e("s_lshl_b32 s42, s37, 2")
e("s_lshl_b32 s41, s50, 1")
e("s_add_u32 s42, s42, s41")
e("s_lshl_b32 s57, s42, 13")
e("s_add_u32 s42, s42, s51")
e("s_lshl_b32 s43, s42, 13")
e("s_waitcnt lgkmcnt(0)")
for (base, p, n) in ((24,4,2097152),(16,6,33554432),(20,8,33554432),(28,10,2097152),(32,14,268435456)):
    e("s_mov_b32 s%d, s%d" % (base, p))
    e("s_and_b32 s%d, s%d, 0xffff" % (base+1, p+1))
    e("s_mov_b32 s%d, %d" % (base+2, n))
    e("s_mov_b32 s%d, 0x00020000" % (base+3))

def dma(kind, ldsoff_imm, soff_sgpr, ldsoff_sgpr=None):
    if ldsoff_sgpr is None:
        e("s_add_u32 m0, s45, %d" % ldsoff_imm)
    else:
        e("s_add_u32 m0, %s, %d" % (ldsoff_sgpr, ldsoff_imm))
    e("s_nop 0")
    if "nodma" in A: return
    srd = {'K':16,'V':20,'Q':24}[kind]
    e("buffer_load_dwordx4 v%d, s[%d:%d], %s offen%s lds" % (vVoff if kind=='V' else vKoff, srd, srd+3, soff_sgpr, NTFLAG))

dma('Q', 32768, "s57")
e("s_add_u32 s46, s57, 8192")
dma('Q', KGB + 32768, "s46")
def issue_static(kind, s):
    e("s_add_u32 s41, s65, %d" % s)
    e("s_and_b32 s41, s41, 7")
    e("s_lshl_b32 s41, s41, 15")
    e("s_add_u32 s41, s41, s39")
    for kg in range(4):
        off = kg*KGB + ((s%2)*8192 if kind == 'K' else 16384 + (s%3)*8192)
        e("s_add_u32 s46, s41, %d" % (kg*8192))
        dma(kind, off, "s46")
issue_static('K', 0); issue_static('K', 1); issue_static('V', 0); issue_static('V', 1)

e("s_cmp_lg_u32 s36, 0")
e("s_cbranch_scc1 L_noclr")
for i in range(4): e("v_mov_b32 v%d, 0" % (S0+i))
e("v_mov_b32 v%d, 0" % vX)
e("s_lshl_b32 s47, s2, 7")
e("s_add_u32 s47, s47, %d" % FLAGS)
e("v_cmp_eq_u32 vcc, 0, v%d" % vLane)
e("s_and_saveexec_b64 s[54:55], vcc")
e("buffer_store_dwordx4 v[%d:%d], v%d, s[32:35], s47 offen sc0 sc1" % (S0, S0+3, vX))
e("s_mov_b64 exec, s[54:55]")
lab("L_noclr")

e("s_mul_i32 s47, s52, %d" % KGB)
e("v_and_b32 v%d, 31, v%d" % (vX, vLane))
e("v_lshrrev_b32 v%d, 5, v%d" % (vY, vLane))
e("v_and_b32 v%d, 15, v%d" % (vZ, vLane))
for t in range(8):
    e("v_or_b32 v%d, %d, v%d" % (vW, 2*t, vY))
    e("v_xor_b32 v%d, v%d, v%d" % (vW, vW, vZ))
    e("v_lshlrev_b32 v%d, 4, v%d" % (vW, vW))
    e("v_lshl_add_u32 v%d, v%d, 8, v%d" % (KA+t, vX, vW))
e("s_mul_i32 s48, s51, %d" % KGB)
e("s_add_u32 s48, s48, 32768")
for t in range(8):
    e("v_add_u32 v%d, s48, v%d" % (S1+t, KA+t))
    e("v_add_u32 v%d, s47, v%d" % (KA+t, KA+t))
e("v_lshrrev_b32 v%d, 5, v%d" % (vX, vLane))
e("v_bfe_u32 v%d, v%d, 2, 2" % (vY, vLane))
e("v_lshl_add_u32 v%d, v%d, 2, v%d" % (vZ, vX, vY))
e("v_lshlrev_b32 v%d, 8, v%d" % (vZ, vZ))
e("v_bfe_u32 v%d, v%d, 4, 1" % (vX, vLane))
e("v_lshl_add_u32 v%d, v%d, 5, v%d" % (vZ, vX, vZ))
e("v_and_b32 v%d, 3, v%d" % (vX, vLane))
e("v_lshl_add_u32 v%d, v%d, 3, v%d" % (vZ, vX, vZ))
e("v_add_u32 v%d, s47, v%d" % (vZ, vZ))
e("v_add_u32 v%d, 16384, v%d" % (vZ, vZ))
for db in range(4):
    e("v_xor_b32 v%d, %d, v%d" % (vW, db, vY))
    e("v_lshl_add_u32 v%d, v%d, 6, v%d" % (VA+db, vW, vZ))
for i in range(64): e("v_mov_b32 v%d, 0" % (O+i))
e("v_mov_b32 v%d, 0" % vL)
e("v_mov_b32 v%d, 0xff800000" % vM)
e("v_mov_b32 v%d, 0xff800000" % vThr)
e("s_mov_b32 s60, 0")
e("s_mov_b32 s61, 0")
e("s_mov_b32 s62, 0")
e("s_mov_b32 s63, 16384")
e("s_add_u32 s68, s65, 2")

uid = [0]
def softmaxA(S):
    r = []
    r.append("v_max3_f32 v%d, v%d, v%d, v%d" % (vT, S, S+1, S+2))
    for i in range(3, 15, 2):
        r.append("v_max3_f32 v%d, v%d, v%d, v%d" % (vT, vT, S+i, S+i+1))
    r.append("v_max_f32 v%d, v%d, v%d" % (vT, vT, S+15))
    r.append("v_mov_b32 v%d, v%d" % (vT2, vT))
    r.append("s_nop 1")
    r.append("v_permlane32_swap_b32 v%d, v%d" % (vT, vT2))
    r.append("v_max_f32 v%d, v%d, v%d" % (vT, vT, vT2))
    u = uid[0]; uid[0] += 1
    r.append("s_nop 0\n    v_cmp_gt_f32 vcc, v%d, v%d\n    s_nop 1\n    s_cbranch_vccnz L_rA%d\nL_bA%d:" % (vT, vThr, u, u))
    TAIL.extend(["L_rA%d:" % u,
      "    v_max_f32 v%d, v%d, v%d" % (vT, vT, vM),
      "    v_sub_f32 v%d, v%d, v%d" % (vAl, vM, vT),
      "    v_mul_f32 v%d, s40, v%d" % (vAl, vAl),
      "    v_exp_f32 v%d, v%d" % (vAl, vAl),
      "    v_mov_b32 v%d, v%d" % (vM, vT),
      "    v_mul_f32 v%d, s40, v%d" % (vMC, vT),
      "    v_add_f32 v%d, 0x42700000, v%d" % (vThr, vT),
      "    s_mov_b32 s62, 1",
      "    s_branch L_bA%d" % u])
    for i in range(16):
        r.append("v_fma_f32 v%d, v%d, s40, -v%d" % (S+i, S+i, vMC))
    for i in range(16):
        r.append("v_exp_f32 v%d, v%d" % (S+i, S+i))
    return r
def softmaxB(S):
    r = []
    u = uid[0]; uid[0] += 1
    r.append("s_cmp_lg_u32 s62, 0\n    s_cbranch_scc1 L_rB%d\nL_bB%d:" % (u, u))
    t = ["L_rB%d:" % u, "    v_mul_f32 v%d, v%d, v%d" % (vL, vL, vAl)]
    for i in range(64): t.append("    v_mul_f32 v%d, v%d, v%d" % (O+i, O+i, vAl))
    t += ["    s_mov_b32 s62, 0", "    s_branch L_bB%d" % u]
    TAIL.extend(t)
    for i in range(16):
        r.append("v_add_f32 v%d, v%d, v%d" % (vL, vL, S+i))
    for i in range(8):
        r.append("v_cvt_pk_bf16_f32 v%d, v%d, v%d" % (P+i, S+2*i, S+2*i+1))
    return r
def cost(ins):
    if ins.startswith("v_exp"): return 2
    return 1
def interleave(mf, va):
    tot = sum(cost(x) for x in va); n = len(mf); vi = 0; acc = 0
    for i,(pre, m) in enumerate(mf):
        for p in pre: e(p)
        e(m)
        target = tot*(i+1)/n
        while vi < len(va) and acc + cost(va[vi]) <= target + 0.01:
            e(va[vi]); acc += cost(va[vi]); vi += 1
    while vi < len(va):
        e(va[vi]); vi += 1

def kreads(slot):
    for k in range(8):
        f = KF + k*4
        e("ds_read_b128 v[%d:%d], v%d offset:%d" % (f, f+3, KA+k, slot*8192))
def vreads():
    for k in range(4):
        e("v_add_u32 v%d, s61, v%d" % (VC+k, VA+k))
    for ks in range(2):
        for db in range(4):
            for u in range(2):
                a = VF + (db*2+ks)*4 + 2*u
                e("ds_read_b64_tr_b16 v[%d:%d], v%d offset:%d" % (a, a+1, VC+db, (ks*16+u*8)*256))
def qk_list(S, nv):
    mf = []
    for k in range(8):
        f = KF + k*4
        pre = ["s_waitcnt lgkmcnt(%d)" % min(15, nv + 7 - k)]
        if k == 0:
            m = "v_mfma_f32_32x32x16_bf16 v[%d:%d], v[%d:%d], v[%d:%d], 0" % (S, S+15, f, f+3, Q, Q+3)
        else:
            m = "v_mfma_f32_32x32x16_bf16 v[%d:%d], v[%d:%d], v[%d:%d], v[%d:%d]" % (S, S+15, f, f+3, Q+4*k, Q+4*k+3, S, S+15)
        mf.append((pre, m))
    return mf
def pv_list():
    mf = []; first = True
    for ks in range(2):
        for db in range(4):
            a = VF + (db*2+ks)*4; o = O+16*db
            pre = []
            if first: pre = ["s_waitcnt lgkmcnt(0)", "s_nop 1"]; first = False
            mf.append((pre, "v_mfma_f32_32x32x16_bf16 v[%d:%d], v[%d:%d], v[%d:%d], v[%d:%d]" % (o, o+15, a, a+3, P+4*ks, P+4*ks+3, o, o+15)))
    return mf
def issue_dyn(kslot, u):
    e("s_cmp_ge_u32 s60, 3")
    e("s_cbranch_scc1 L_noiss%d" % u)
    e("s_and_b32 s58, s68, 7")
    e("s_lshl_b32 s58, s58, 15")
    e("s_add_u32 s58, s58, s39")
    for kg in range(4):
        e("s_add_u32 s46, s58, %d" % (kg*8192))
        dma('K', kg*KGB + kslot*8192, "s46")
    e("s_add_u32 s59, s45, s63")
    for kg in range(4):
        e("s_add_u32 s46, s58, %d" % (kg*8192))
        dma('V', kg*KGB + 16384, "s46", "s59")
    lab("L_noiss%d" % u)
def advance():
    e("s_add_u32 s68, s68, 1")
    e("s_mov_b32 s63, s61")
    e("s_add_u32 s61, s61, 8192")
    e("s_cmp_eq_u32 s61, 24576")
    e("s_cselect_b32 s61, 0, s61")

c("===== phase -1")
e("s_waitcnt vmcnt(%d)" % (12))
e("s_cmp_lg_u32 s36, 0")
e("s_cbranch_scc1 L_nordy")
e("s_waitcnt vmcnt(0)" if False else "s_nop 0")
lab("L_nordy")
e("s_barrier")
stamp()
for t in range(8):
    e("ds_read_b128 v[%d:%d], v%d" % (Q+4*t, Q+4*t+3, S1+t))
kreads(0)
e("s_waitcnt lgkmcnt(0)")
for (pre, m) in qk_list(S0, 0): e(m)
e("s_nop 15")
for x in softmaxA(S0): e(x)

lab("L_loop")
for par in range(2):
    c("===== phase parity %d" % par)
    Sc = S0 if par == 0 else S1
    Sn = S1 if par == 0 else S0
    if par == 1:
        e("s_cmp_eq_u32 s60, 3")
        e("s_cbranch_scc1 L_final")
    e("s_waitcnt vmcnt(4)")
    if par == 1:
        e("s_or_b32 s47, s36, s60")
        e("s_cmp_lg_u32 s47, 0")
        e("s_cbranch_scc1 L_nordy2")
        e("s_and_b32 s48, s2, 31")
        e("s_lshl_b32 s49, 1, s48")
        e("s_lshr_b32 s47, s2, 5")
        e("s_lshl_b32 s47, s47, 2")
        e("v_mov_b32 v%d, s49" % vX)
        e("v_mov_b32 v%d, s47" % vY)
        e("v_cmp_eq_u32 vcc, 0, v%d" % vLane)
        e("s_and_saveexec_b64 s[54:55], vcc")
        e("global_atomic_or v%d, v%d, s[12:13] sc1" % (vY, vX))
        e("s_mov_b64 exec, s[54:55]")
        lab("L_nordy2")
    e("s_barrier")
    issue_dyn(par, par)
    kreads(1-par)
    vreads()
    interleave(qk_list(Sn, 16), softmaxB(Sc))
    mf = pv_list()
    for p in mf[0][0]: e(p)
    e(mf[0][1]); e(mf[1][1])
    e("s_nop 9")
    interleave(mf[2:], softmaxA(Sn))
    advance()
e("s_add_u32 s60, s60, 1")
e("s_branch L_loop")
lab("L_final")
e("s_waitcnt vmcnt(0)")
e("s_barrier")
vreads()
for x in softmaxB(S1): e(x)
for (pre, m) in pv_list():
    for p in pre: e(p)
    e(m)
stamp()

def dump_stamps():
    if not STAMP: return
    n = nstamp[0]
    e("s_cmp_lg_u32 s36, 0")
    e("s_cbranch_scc1 L_nost%d" % n)
    e("s_waitcnt lgkmcnt(0)")
    e("s_lshl_b32 s47, s2, 8")
    e("s_add_u32 s47, s47, 0x4000000")
    for i in range(n):
        e("v_mov_b32 v%d, s%d" % (vX, 70+2*i))
        e("v_mov_b32 v%d, %d" % (vY, 4*i))
        e("buffer_store_dword v%d, v%d, s[32:35], s47 offen" % (vX, vY))
    lab("L_nost%d" % n)

if "nocomb" in A:
    stamp(); dump_stamps()
    e("s_endpgm")
c("===== merge in LDS")
e("s_xor_b32 s56, s2, 16")
e("s_lshr_b32 s47, s56, 5")
e("s_lshl_b32 s47, s47, 2")
e("v_mov_b32 v15, s47")
e("global_load_dword v%d, v15, s[12:13] sc1" % (vRdy))
e("v_mov_b32 v%d, v%d" % (vT2, vL))
e("v_lshlrev_b32 v%d, 4, v%d" % (vX, vLane))
e("s_nop 0")
e("v_permlane32_swap_b32 v%d, v%d" % (vL, vT2))
e("v_add_f32 v%d, v%d, v%d" % (vL, vL, vT2))
e("s_mul_i32 s47, s52, %d" % KGB)
e("s_mul_i32 s48, s51, 12288")
e("s_add_u32 s48, s48, s47")
e("v_add_u32 v%d, s48, v%d" % (vY, vX))
e("s_lshl_b32 s49, s51, 9")
e("s_add_u32 s49, s49, s47")
e("s_add_u32 s49, s49, 32768")
e("v_lshlrev_b32 v%d, 3, v%d" % (vZ, vLane))
e("v_add_u32 v%d, s49, v%d" % (vW, vZ))
e("v_mov_b32 v%d, v%d" % (vT, vMC))
e("v_mov_b32 v%d, v%d" % (vT2, vL))
e("ds_write_b64 v%d, v[%d:%d]" % (vW, vT, vT2))
for kg in range(4):
    if kg < 3:
        e("s_cmp_lg_u32 s52, %d" % kg)
        e("s_cbranch_scc1 L_mw%d" % (kg+1))
    j = 0
    for db in range(4):
        if db == kg: continue
        for i in range(4):
            e("ds_write_b128 v%d, v[%d:%d] offset:%d" % (vY, O+16*db+4*i, O+16*db+4*i+3, j*4096+i*1024))
        j += 1
    for i in range(16):
        e("v_mov_b32 v%d, v%d" % (S0+i, O+16*kg+i))
    if kg < 3:
        e("s_branch L_mwdone")
        lab("L_mw%d" % (kg+1))
lab("L_mwdone")
e("s_waitcnt lgkmcnt(0)")
e("s_barrier")
stamp()
for t in range(1, 4):
    e("s_add_u32 s47, s52, %d" % t)
    e("s_and_b32 s47, s47, 3")
    e("s_mul_i32 s48, s47, %d" % KGB)
    e("s_cmp_lt_u32 s52, s47")
    e("s_cselect_b32 s49, 0, 1")
    e("s_sub_u32 s49, s52, s49")
    e("s_lshl_b32 s49, s49, 12")
    e("s_add_u32 s49, s49, s48")
    e("s_mul_i32 s46, s51, 12288")
    e("s_add_u32 s49, s49, s46")
    e("v_add_u32 v%d, s49, v%d" % (vY, vX))
    for i in range(4):
        r = KF + ((t-1)*4+i)*4
        e("ds_read_b128 v[%d:%d], v%d offset:%d" % (r, r+3, vY, i*1024))
    e("s_lshl_b32 s49, s51, 9")
    e("s_add_u32 s49, s49, s48")
    e("s_add_u32 s49, s49, 32768")
    e("v_add_u32 v%d, s49, v%d" % (vW, vZ))
    e("ds_read_b64 v[%d:%d], v%d" % (Q+2*t, Q+2*t+1, vW))
e("v_mov_b32 v%d, v%d" % (Q, vMC))
e("v_mov_b32 v%d, v%d" % (Q+1, vL))
e("s_waitcnt lgkmcnt(0)")
e("v_max3_f32 v%d, v%d, v%d, v%d" % (vT, Q, Q+2, Q+4))
e("v_max_f32 v%d, v%d, v%d" % (vMC, vT, Q+6))
for k in range(4):
    e("v_sub_f32 v%d, v%d, v%d" % (Q+8+k, Q+2*k, vMC))
for k in range(4):
    e("v_exp_f32 v%d, v%d" % (Q+8+k, Q+8+k))
e("s_nop 0")
e("v_mul_f32 v%d, v%d, v%d" % (vL, Q+1, Q+8))
for k in range(1,4):
    e("v_fmac_f32 v%d, v%d, v%d" % (vL, Q+2*k+1, Q+8+k))
for i in range(16):
    e("v_mul_f32 v%d, v%d, v%d" % (O+i, S0+i, Q+8))
    for k in range(1,4):
        e("v_fmac_f32 v%d, v%d, v%d" % (O+i, KF+16*(k-1)+i, Q+8+k))
stamp()
e("s_cmp_eq_u32 s51, s38")
e("s_cbranch_scc1 L_consumer")
e("s_and_b32 s48, s56, 31")
e("s_add_u32 s48, s48, 0x10000")
e("s_waitcnt vmcnt(0)")
lab("L_rdy")
e("v_readfirstlane_b32 s46, v%d" % vRdy)
e("s_bfe_u32 s46, s46, s48")
e("s_cmp_ge_u32 s46, 1")
e("s_cbranch_scc1 L_rdy_ok")
e("s_sleep 4")
e("global_load_dword v%d, v15, s[12:13] sc1" % (vRdy))
e("s_waitcnt vmcnt(0)")
e("s_branch L_rdy")
lab("L_rdy_ok")
e("s_lshl_b32 s48, s56, 2")
e("s_add_u32 s48, s48, s52")
e("s_lshl_b32 s48, s48, 13")
for i in range(4):
    e("buffer_store_dwordx4 v[%d:%d], v%d, s[32:35], s48 offen offset:%d sc0 sc1" % (O+4*i, O+4*i+3, vX, i*1024))
e("s_add_u32 s48, s48, 4096")
e("v_mov_b32 v%d, v%d" % (vT, vMC))
e("v_mov_b32 v%d, v%d" % (vT2, vL))
e("buffer_store_dwordx2 v[%d:%d], v%d, s[32:35], s48 offen sc0 sc1" % (vT, vT2, vZ))
e("s_waitcnt vmcnt(0)")
e("s_lshl_b32 s48, s56, 7")
e("s_lshl_b32 s47, s52, 2")
e("s_add_u32 s48, s48, s47")
e("s_add_u32 s48, s48, %d" % FLAGS)
e("v_mov_b32 v%d, 1" % vT)
e("v_mov_b32 v%d, 0" % vT2)
e("v_cmp_eq_u32 vcc, 0, v%d" % vLane)
e("s_and_saveexec_b64 s[54:55], vcc")
e("buffer_store_dword v%d, v%d, s[32:35], s48 offen sc0 sc1" % (vT, vT2))
e("s_branch L_end")
lab("L_consumer")
e("s_lshl_b32 s48, s2, 7")
e("s_lshl_b32 s47, s52, 2")
e("s_add_u32 s48, s48, s47")
e("s_add_u32 s48, s48, %d" % FLAGS)
e("v_mov_b32 v%d, 0" % vT2)
lab("L_poll")
e("buffer_load_dword v%d, v%d, s[32:35], s48 offen sc0 sc1" % (vW, vT2))
e("s_waitcnt vmcnt(0)")
e("v_readfirstlane_b32 s46, v%d" % vW)
e("s_cmp_eq_u32 s46, 1")
e("s_cbranch_scc1 L_go")
e("s_branch L_poll")
lab("L_go")
stamp()
e("s_lshl_b32 s48, s2, 2")
e("s_add_u32 s48, s48, s52")
e("s_lshl_b32 s48, s48, 13")
for i in range(4):
    e("buffer_load_dwordx4 v[%d:%d], v%d, s[32:35], s48 offen offset:%d sc0 sc1" % (KF+4*i, KF+4*i+3, vX, i*1024))
e("s_add_u32 s48, s48, 4096")
e("buffer_load_dwordx2 v[%d:%d], v%d, s[32:35], s48 offen sc0 sc1" % (Q, Q+1, vZ))
e("s_waitcnt vmcnt(0)")
e("v_max_f32 v%d, v%d, v%d" % (vT, vMC, Q))
e("v_sub_f32 v%d, v%d, v%d" % (Q+2, vMC, vT))
e("v_sub_f32 v%d, v%d, v%d" % (Q+3, Q, vT))
e("v_exp_f32 v%d, v%d" % (Q+2, Q+2))
e("v_exp_f32 v%d, v%d" % (Q+3, Q+3))
e("s_nop 0")
e("v_mul_f32 v%d, v%d, v%d" % (vL, vL, Q+2))
e("v_fmac_f32 v%d, v%d, v%d" % (vL, Q+1, Q+3))
e("v_rcp_f32 v%d, v%d" % (vL, vL))
e("s_nop 0")
e("v_mul_f32 v%d, v%d, v%d" % (Q+2, Q+2, vL))
e("v_mul_f32 v%d, v%d, v%d" % (Q+3, Q+3, vL))
for i in range(16):
    e("v_mul_f32 v%d, v%d, v%d" % (O+i, O+i, Q+2))
    e("v_fmac_f32 v%d, v%d, v%d" % (O+i, KF+i, Q+3))
e("v_and_b32 v%d, 31, v%d" % (vX, vLane))
e("v_lshrrev_b32 v%d, 5, v%d" % (vY, vLane))
e("v_lshlrev_b32 v%d, 8, v%d" % (vX, vX))
e("v_lshl_add_u32 v%d, v%d, 3, v%d" % (vX, vY, vX))
e("s_lshl_b32 s47, s52, 6")
e("s_add_u32 s47, s47, s43")
for i in range(4):
    e("v_cvt_pk_bf16_f32 v%d, v%d, v%d" % (Q+8+2*i, O+4*i, O+4*i+1))
    e("v_cvt_pk_bf16_f32 v%d, v%d, v%d" % (Q+8+2*i+1, O+4*i+2, O+4*i+3))
for i in range(4):
    e("buffer_store_dwordx2 v[%d:%d], v%d, s[28:31], s47 offen offset:%d" % (Q+8+2*i, Q+8+2*i+1, vX, i*16))
e("s_cmp_ge_u32 s2, 8")
e("s_cbranch_scc1 L_end")
e("s_cmp_lg_u32 s36, 0")
e("s_cbranch_scc1 L_end")
e("s_waitcnt vmcnt(0)")
e("s_memrealtime s[92:93]")
e("s_waitcnt lgkmcnt(0)")
e("s_sub_u32 s92, s92, s90")
e("s_lshl_b32 s47, s2, 2")
e("s_add_u32 s47, s47, 32")
e("v_mov_b32 v%d, s92" % vX)
e("v_mov_b32 v%d, s47" % vY)
e("global_store_dword v%d, v%d, s[12:13]" % (vY, vX))
lab("L_end")
e("s_endpgm")
L.extend(TAIL)

ftr = """
.section .rodata,"a"
.p2align 6
.amdhsa_kernel standalone__gqa_softmax__sampling_kernel
  .amdhsa_next_free_vgpr %d
  .amdhsa_next_free_sgpr 102
  .amdhsa_accum_offset %d
  .amdhsa_group_segment_fixed_size 0
  .amdhsa_kernarg_size 48
  .amdhsa_user_sgpr_count 2
  .amdhsa_user_sgpr_kernarg_segment_ptr 1
  .amdhsa_system_sgpr_workgroup_id_x 1
.end_amdhsa_kernel
""" % (NVGPR, NVGPR)
open("standalone__gqa_softmax__sampling.s", "w").write(hdr + "\n".join(L) + "\n" + ftr)
```
